```python
import torch

def _softmax(x, axis=-1):
    return torch.softmax(x, dim=axis)
def _gelu(x):
    return torch.nn.functional.gelu(x, approximate="tanh")
def _silu(x):
    return torch.nn.functional.silu(x)
def _sigmoid(x):
    return torch.sigmoid(x)
def _layernorm(x, axis=-1, eps=1e-5):
    m = x.mean(dim=axis, keepdim=True)
    v = x.var(dim=axis, keepdim=True, unbiased=False)
    return (x - m) / torch.sqrt(v + eps)
def _scatter_add(tgt, idx, src, axis=0):
    return tgt.clone().index_add_(axis, idx, src)
def _segment_sum(src, seg, n):
    out = torch.zeros((n,) + src.shape[1:], dtype=src.dtype)
    return out.index_add_(0, seg, src)
def _pad(x, pw):
    flat = tuple(v for pair in reversed(pw) for v in pair)
    return torch.nn.functional.pad(x, flat)

kernel_name = 'recurrent_scan__ssm_conv_s4__moe_arch_mod__prompt'

def setup_inputs():

    _w = (lambda a: (lambda t: t.to(torch.bfloat16) if t.is_floating_point() else t)(torch.as_tensor(a)))
    def _A_setup():
        B, L, D, N = 1, 2048, 576, 128
        A_re = -(lambda _x: torch.exp(torch.as_tensor(_x)))((lambda *s: torch.randn(*s, dtype=torch.bfloat16) * 6.4)(D, N))
        A_im = torch.pi * (lambda *s: torch.randn(*s, dtype=torch.bfloat16) * 0.05)(D, N)
        B_re = (lambda *s: torch.randn(*s, dtype=torch.bfloat16) * 0.1)(D, N)
        B_im = (lambda *s: torch.randn(*s, dtype=torch.bfloat16) * 0.1)(D, N)
        C_re = (lambda *s: torch.randn(*s, dtype=torch.bfloat16) * 0.1)(D, N)
        C_im = (lambda *s: torch.randn(*s, dtype=torch.bfloat16) * 0.1)(D, N)
        log_dt = (lambda *s: torch.randn(*s, dtype=torch.bfloat16) * 0.05)(D) * 0.5 - 4.0
        Dskip = (lambda *s: torch.randn(*s, dtype=torch.bfloat16) * 0.05)(D)
        return {
            "u": _w((lambda *s: torch.randn(*s, dtype=torch.bfloat16) * 0.05)(B, L, D)),
            "A_re": _w(A_re),
            "A_im": _w(A_im),
            "B_re": _w(B_re),
            "B_im": _w(B_im),
            "C_re": _w(C_re),
            "C_im": _w(C_im),
            "log_dt": _w(log_dt),
            "Dskip": _w(Dskip),
        }
    _A_in = _A_setup()

    def _B_setup():
        B, S, D, F, C = 1, 2048, 576, 4608, 8
        return {
            "x": _w((lambda *s: torch.randn(*s, dtype=torch.bfloat16) * 0.05)(B, S, D)),
            "w_r": _w((lambda *s: torch.randn(*s, dtype=torch.bfloat16) * 0.05)(D)),
            "w_gate": _w((lambda *s: torch.randn(*s, dtype=torch.bfloat16) * 0.05)(D, F)),
            "w_up": _w((lambda *s: torch.randn(*s, dtype=torch.bfloat16) * 0.05)(D, F)),
            "w_down": _w((lambda *s: torch.randn(*s, dtype=torch.bfloat16) * 0.05)(F, D)),
        }
    _B_in = _B_setup()

    return {
        "A_u": _A_in["u"],
        "A_A_re": _A_in["A_re"],
        "A_A_im": _A_in["A_im"],
        "A_B_re": _A_in["B_re"],
        "A_B_im": _A_in["B_im"],
        "A_C_re": _A_in["C_re"],
        "A_C_im": _A_in["C_im"],
        "A_log_dt": _A_in["log_dt"],
        "A_Dskip": _A_in["Dskip"],
        "B_x": _B_in["x"],
        "B_w_r": _B_in["w_r"],
        "B_w_gate": _B_in["w_gate"],
        "B_w_up": _B_in["w_up"],
        "B_w_down": _B_in["w_down"],
    }

def reference(A_u, A_A_re, A_A_im, A_B_re, A_B_im, A_C_re, A_C_im, A_log_dt, A_Dskip, B_x, B_w_r, B_w_gate, B_w_up, B_w_down):
    def _A_ref(u, A_re, A_im, B_re, B_im, C_re, C_im, log_dt, Dskip):
        Bsz, L, D = u.shape
        dt = torch.exp(log_dt)[:, None]
        A = A_re + 1j * A_im
        Bc = B_re + 1j * B_im
        Cc = C_re + 1j * C_im
        logdA = dt * A
        dB = dt * Bc
        l = (lambda x, dt: x.to(dt))(torch.arange(L), A_re.dtype)
        P = torch.exp(logdA[:, :, None] * l[None, None, :])
        K = torch.einsum("dn,dnl,dn->dl", Cc, P, dB).real
        L2 = 2 * L
        Kp = _pad(K, ((0, 0), (0, L)))
        up = (lambda x, *d: x.permute(*d))(u, 0, 2, 1)
        up = _pad(up, ((0, 0), (0, 0), (0, L)))
        Kf = (lambda x, axes=(-2,-1): torch.fft.rfft2(x.float(), dim=axes))(Kp[:, None, :], axes=(-2, -1))
        Uf = (lambda x, axes=(-2,-1): torch.fft.rfft2(x.float(), dim=axes))(up[:, :, None, :], axes=(-2, -1))
        Yf = Uf * Kf[None, :, :, :]
        y = (lambda x, s, axes=(-2,-1): torch.fft.irfft2(x, s=s, dim=axes).to(torch.bfloat16))(Yf, (1, L2), axes=(-2, -1))[:, :, 0, :L]
        y = (lambda x, *d: x.permute(*d))(y, 0, 2, 1) + u * Dskip[None, None, :]
        return y

    def _B_ref(x, w_r, w_gate, w_up, w_down):
        B, S, D = x.shape
        C = 8
        r = x @ w_r
        idx = torch.argsort(-r, axis=-1)[:, :C]
        idx_e = (lambda x, n, axis: torch.repeat_interleave(x, n, dim=axis))(idx.reshape(B, C, 1), D, axis=2)
        x_sel = (lambda x, i, axis: torch.take_along_dim(x, i, dim=axis))(x, idx_e, axis=1)
        g = _silu(x_sel @ w_gate)
        u = x_sel @ w_up
        y = (g * u) @ w_down
        r_sel = _sigmoid((lambda x, i, axis: torch.take_along_dim(x, i, dim=axis))(r, idx, axis=1))
        y = y * r_sel.reshape(B, C, 1)
        b_off = (torch.arange(B) * S).reshape(B, 1)
        flat_idx = (idx + b_off).reshape(B * C)
        zero = (x * 0.0).reshape(B * S, D)
        upd = _scatter_add(zero, flat_idx, y.reshape(B * C, D), axis=0)
        return x + upd.reshape(B, S, D)

    x = A_u
    xn = _layernorm(x, axis=-1)
    s = _A_ref(xn, A_A_re, A_A_im, A_B_re, A_B_im, A_C_re, A_C_im, A_log_dt, A_Dskip)
    g = _silu(_B_ref(xn, B_w_r, B_w_gate, B_w_up, B_w_down))
    return x + s * g
```

```python
import re

TRANS = ("v_exp_f32", "v_log_f32", "v_rcp_f32", "v_rsq_f32", "v_sqrt_f32", "v_sin_f32", "v_cos_f32")

def _regs(tok):
    tok = tok.strip()
    tok = re.sub(r"^-", "", tok)
    m = re.match(r"^abs\((.*)\)$", tok) or re.match(r"^\|(.*)\|$", tok)
    if m: tok = m.group(1)
    m = re.match(r"^([vsa])\[(\d+):(\d+)\]$", tok)
    if m:
        return {f"{m.group(1)}{i}" for i in range(int(m.group(2)), int(m.group(3)) + 1)}
    m = re.match(r"^([vsa])(\d+)$", tok)
    if m: return {tok}
    if tok in ("vcc", "vcc_lo", "vcc_hi"): return {"vcc"}
    if tok in ("exec", "exec_lo", "exec_hi"): return {"exec"}
    if tok == "m0": return {"m0"}
    return set()

class Ins:
    def __init__(self, text):
        self.text = text
        t = text.split(";")[0].strip()
        self.op, _, rest = t.partition(" ")
        ops, cur, depth = [], "", 0
        for ch in rest:
            if ch == "[": depth += 1
            if ch == "]": depth -= 1
            if ch == "," and depth == 0:
                ops.append(cur.strip()); cur = ""
            else: cur += ch
        if cur.strip(): ops.append(cur.strip())
        mods = ""
        if ops:
            parts = ops[-1].split(None, 1)
            ops[-1] = parts[0]
            mods = parts[1] if len(parts) > 1 else ""
        self.ops, self.mods = ops, mods
        op = self.op
        self.is_mfma = op.startswith("v_mfma") or op.startswith("v_smfmac")
        self.is_valu = op.startswith("v_") and not self.is_mfma
        self.is_ds = op.startswith("ds_")
        self.is_vmem = op.startswith("global_") or op.startswith("buffer_") or op.startswith("flat_")
        self.is_salu = op.startswith("s_")
        self.is_trans = op.replace("_e32", "").replace("_e64", "") in TRANS
        self.is_dot = op.startswith("v_dot")
        self.is_dpp = ("row_" in mods) or ("quad_perm" in mods) or ("wave_" in mods) or op.endswith("_dpp")
        self.is_perml = op.startswith("v_permlane")
        self.is_rdlane = op.startswith("v_readlane") or op.startswith("v_readfirstlane")
        self.is_sdwa_dst = ("dst_sel" in mods and "dst_sel:DWORD" not in mods)
        R = [_regs(o) for o in ops]
        self.w, self.r = set(), set()
        self.srcC = set(); self.srcAB = set(); self.stdata = set()
        if self.is_mfma:
            self.w = R[0]
            if op.startswith("v_smfmac"):
                self.srcC = R[0]; self.srcAB = R[1] | R[2] | R[3]
            else:
                self.srcAB = R[1] | R[2]; self.srcC = R[3]
            self.r = self.srcAB | self.srcC
            self.passes = 8 if "32x32" in op else 4
        elif self.is_valu:
            nw = 1
            if op.startswith(("v_add_co", "v_sub_co", "v_addc_co", "v_subb_co", "v_subrev_co", "v_mad_u64")): nw = 2
            for x in R[:nw]: self.w |= x
            for x in R[nw:]: self.r |= x
            if op.startswith(("v_fmac", "v_dot2c", "v_writelane", "v_pk_fmac")) or self.is_dpp or self.is_sdwa_dst: self.r |= R[0]
            if self.is_perml or op.startswith("v_swap"): self.w |= R[1]; self.r |= R[0]
            if op.startswith("v_cmpx"): self.w.add("exec")
        elif self.is_ds:
            if op.startswith(("ds_read", "ds_bpermute", "ds_permute", "ds_swizzle")) or "_rtn" in op:
                self.w = R[0]
                for x in R[1:]: self.r |= x
                if "d16" in op: self.r |= R[0]
            else:
                for x in R: self.r |= x
            if "addtid" in op: self.r.add("m0")
        elif self.is_vmem:
            if "_load_lds" in op or " lds" in (" " + mods):
                for x in R: self.r |= x
                self.r.add("m0")
            elif "_load" in op:
                self.w = R[0]
                for x in R[1:]: self.r |= x
            else:
                for x in R: self.r |= x
                if "x3" in op or "x4" in op:
                    self.stdata = R[1] if op.startswith("global") else R[0]
        elif self.is_salu:
            if op.startswith(("s_cmp", "s_cbranch", "s_branch", "s_waitcnt", "s_nop", "s_barrier", "s_endpgm", "s_setprio", "s_sleep", "s_bitcmp")):
                for x in R: self.r |= x
            else:
                if R: self.w = R[0]
                for x in R[1:]: self.r |= x
                if "saveexec" in op: self.w = self.w | {"exec"}
        self.states = 1
        if op == "s_nop": self.states = int(ops[0]) + 1

def need(p, c):
    n = 0
    vw = {x for x in p.w if x[0] in "va" and x not in ("vcc",)}
    sw = {x for x in p.w if x[0] == "s" or x == "vcc"}
    if p.is_valu:
        if c.is_mfma and vw & c.r: n = max(n, 3 if p.is_dot else 2)
        if c.is_valu and c.is_dpp and vw & c.r: n = max(n, 2)
        if c.is_perml and vw & c.r: n = max(n, 2)
        if c.is_rdlane and vw & c.r: n = max(n, 1)
        if p.is_trans and (c.is_valu or c.is_mfma) and not c.is_trans and vw & c.r: n = max(n, 1)
        if p.is_trans and (c.is_ds or c.is_vmem) and vw & c.r: n = max(n, 1)
        if p.is_sdwa_dst and c.is_valu and vw & (c.r | c.w): n = max(n, 1)
        if p.is_dot and (vw & (c.r | c.w)) and not (c.op == p.op and not (vw & (set().union(*[_regs(o) for o in c.ops[1:3]])))): n = max(n, 3)
        if sw:
            if c.is_vmem and sw & c.r: n = max(n, 5)
            if c.is_valu and sw & c.r:
                n = max(n, 4 if (c.op.startswith(("v_readlane", "v_writelane"))) else 2)
            if c.is_valu and "vcc" in sw and c.op.startswith(("v_cndmask", "v_addc", "v_subb", "v_div_fmas")): n = max(n, 2)
            if c.is_salu and sw & c.r: n = max(n, 1)
        if "exec" in p.w:
            if c.is_dpp: n = max(n, 5)
            if c.is_mfma or c.is_rdlane or c.is_perml: n = max(n, 4)
    if p.is_mfma:
        big = p.passes == 8
        if c.is_mfma:
            if vw & c.srcAB: n = max(n, 12 if big else 8)
            if vw & c.srcC and not (c.srcC == p.w and c.op == p.op): n = max(n, 10 if big else 6)
            if vw & c.w and not (vw & c.srcC): n = max(n, 12 if big else 8)
        elif (c.is_valu or c.is_ds or c.is_vmem) and vw & (c.r | c.w): n = max(n, 12 if big else 8)
        if c.is_valu and p.srcC & c.w: n = max(n, 7 if big else 3)
    if p.stdata and (p.stdata & c.w): n = max(n, 2)
    if p.is_salu and "m0" in p.w and "m0" in c.r and (c.is_ds or c.is_vmem): n = max(n, 1)
    return n

class Asm:
    def __init__(self):
        self.lines = []
        self.hist = []
        self.nnop = 0
    def raw(self, text):
        self.lines.append(text)
    def label(self, name):
        self.lines.append(name + ":")
    def __call__(self, text):
        for ln in text.split("\n"):
            s = ln.strip()
            if not s: continue
            if s.startswith(";"):
                self.lines.append("    " + s); continue
            if s.endswith(":") or s.startswith("."):
                self.lines.append(s); continue
            ins = Ins(s)
            dist, pad = 0, 0
            for p in reversed(self.hist):
                pad = max(pad, need(p, ins) - dist)
                dist += p.states
                if dist >= 12: break
            if pad > 0:
                nop = Ins(f"s_nop {pad-1}")
                self.lines.append(f"    s_nop {pad-1}")
                self.hist.append(nop); self.nnop += 1
            self.lines.append("    " + s)
            self.hist.append(ins)
            if ins.op in ("s_branch", "s_endpgm"): self.hist = []
            if len(self.hist) > 24: self.hist = self.hist[-16:]
    def pad(self, text):
        ins = Ins(text.strip()); dist, pad = 0, 0
        for p in reversed(self.hist):
            pad = max(pad, need(p, ins) - dist)
            dist += p.states
            if dist >= 12: break
        return pad
    def text(self):
        return "\n".join(self.lines) + "\n"

def vr(a, n=1):
    return f"v{a}" if n == 1 else f"v[{a}:{a+n-1}]"
def sr(a, n=1):
    return f"s{a}" if n == 1 else f"s[{a}:{a+n-1}]"
```

```python
import sys
from asm import Asm, Ins, vr, sr

NAME = "recurrent_scan__ssm_conv_s4__moe_arch_mod__prompt"
WS_STATS = 0x1000
WS_SEL = 0x10000
WS_SELX = 0x20000
LSPIN = 48
L_TAGR = 20480
WS_FLAG = 0x40000
WS_GO = 0x44000
WS_PART = 0x100000
WS_STAMP = 0x400000
WS_DBG = 0x800000
SPIN = 1 << 16
STG_ROW = 2064
STG_HI = 32 * STG_ROW
STG_M0 = 45056
L_Y = 0
Y_T, Y_CH = 1280, 10240
L_U = 109440
U_ROW = 4608
L_KT = L_U + 4 * U_ROW
KT_W = 3328
TA, TB, T2 = 0, 1216, 2432
L_B = L_KT + 4 * KT_W
L_TAG = L_B + 6144
L_MK = L_TAG + 64
L_GR = L_MK + 2048
LDS_BYTES = L_GR + 64
S_X, S_LDT, S_DSK, S_WR, S_WG, S_WU, S_WD, S_OUT, S_DBG, S_WS = 4, 18, 20, 24, 26, 28, 30, 32, 34, 36
S_WAVE, S_XCD, S_SLOT, S_TAG = 38, 39, 40, 41
S_R, S_NOLN = 63, 64
LOG2E = 0x3fb8aa3b
NLOG2E = 0xbfb8aa3b
INV2PI = 0x3e22f983
HI = 0xffff0000
LN2SQ = 0x3ef5fdf0
NLN2 = 0xbf317218
NF = (6, 6, 10, 10, 10, 10, 10, 10)

BEST = {"plim": 2, "gp": (5, 5), "hs": "hy @2 g g g g S B fr DN w0 @6 p s1 u0 u1 @3 | g g | g g | dn | | | |", "dnc": {10: 32, 6: 12}, "g2": 4, "fdn": 4,
        "pgu": {10: 4}, "gsync": (23,), "fstr": 16, "mk": 24, "early": 0, "hp1": 3, "hlate": 1, "spec": 1, "hq": 1, "fm": 1}

class Gen:
    def __init__(self, opt):
        self.o = dict(BEST); self.o.update(opt)
        self.a = Asm()
        self.stamps = self.o.get("stamps", 0)
        self.dsq = []
        self.dsn = 0
        self.nH = self.o.get("nH", 2)
        self.ex = 16 // self.nH
        self.nf = self.o.get("nf", {1: (1, 11, 11, 10, 10, 10, 10, 10), 2: NF, 4: (8, 8, 8, 8, 10, 10, 10, 10)}[self.nH])
        self.nfr = ((0,) + tuple(self.nf[1:])) if self.nH == 1 else self.nf
        self.ks = 0
        self.fm = self.o.get("fm", 0)
        self.wgp = self.o.get("wgp", 0)
        self.hl = self.o.get("hlate", 0)
        self.gd = self.o.get("gd")
        self.ls = self.o.get("lsel", 0)
        self.RE = 16 if self.o.get("hold") else 18
        self.dnc = self.par("dnc", {1: 1, 4: 1, 5: 1, 6: 1, 7: 1, 8: 1, 9: 1, 10: 1, 11: 1, 12: 1})
        self.cgu = self.par("cgu", {1: 0, 4: 0, 5: 0, 6: 0, 7: 0, 8: 0, 9: 0, 10: 0, 11: 0, 12: 0})
        self.pgu = self.par("pgu", {1: 0, 4: 0, 5: 0, 6: 0, 7: 0, 8: 2, 9: 3, 10: 3, 11: 3, 12: 2})
    def stamp(self, i):
        if self.stamps == 2 and i not in (0, 11): return
        if self.stamps == 3 and i not in (0, self.o["diag"][1]): return
        if self.stamps: self.a(f"{'s_memtime' if self.o.get('clk') else 's_memrealtime'} s[{70+2*i}:{71+2*i}]")
    def ds(self, text):
        self.a(text); self.dsn += 1; self.dsq.append(self.dsn); return self.dsn
    def dswait(self, k):
        if k not in self.dsq: return
        after = len(self.dsq) - 1 - self.dsq.index(k)
        self.a(f"s_waitcnt lgkmcnt({min(after, 15)})")
        self.dsq = self.dsq[len(self.dsq) - min(after, 15):] if after else []
    def dsall(self):
        self.a("s_waitcnt lgkmcnt(0)"); self.dsq = []
    def mktag(self):
        self.a(f"""s_waitcnt lgkmcnt(0)
s_mul_i32 s{S_TAG}, s{S_TAG}, 1664525
s_add_u32 s{S_TAG}, s{S_TAG}, 1013904223""")
    def ptags(self, d, t):
        L = [f"s_lshr_b32 s{t}, s{S_TAG}, 4", f"s_xor_b32 s{t}, s{t}, s{S_TAG}", f"s_and_b32 s{t}, s{t}, 15", f"s_cselect_b32 s{t}, 0, 16", f"s_xor_b32 s{t}, s{t}, s{S_TAG}"]
        for c in range(4):
            L += [f"s_bfe_u32 s{d+c}, s{t}, {hex(0x40000 + 4*c)}", f"s_mul_i32 s{d+c}, s{d+c}, 0x08002000", f"s_and_b32 s{d+c}, s{d+c}, 0x60006000"]
        return L
    def cmul(self, d, z, c, t, conj=False, nc=None):
        a = self.a
        if self.o.get("wi_k"): return
        if nc is not None:
            a(f"v_mul_f32 v{d}, v{z}, v{c}\nv_mul_f32 v{d+1}, v{z}, v{nc if conj else c+1}")
            a(f"v_fmac_f32 v{d}, v{z+1}, v{c+1 if conj else nc}\nv_fmac_f32 v{d+1}, v{z+1}, v{c}")
            return
        if conj:
            a(f"v_pk_mul_f32 {vr(t,2)}, {vr(z,2)}, {vr(c,2)} op_sel:[0,0] op_sel_hi:[0,1] neg_hi:[0,1]")
            a(f"v_pk_fma_f32 {vr(d,2)}, {vr(z,2)}, {vr(c,2)}, {vr(t,2)} op_sel:[1,1,0] op_sel_hi:[1,0,1]")
        else:
            a(f"v_pk_mul_f32 {vr(t,2)}, {vr(z,2)}, {vr(c,2)} op_sel:[0,0] op_sel_hi:[0,1]")
            a(f"v_pk_fma_f32 {vr(d,2)}, {vr(z,2)}, {vr(c,2)}, {vr(t,2)} op_sel:[1,1,0] op_sel_hi:[1,0,1] neg_lo:[0,1,0]")
    def finish(self, nm):
        a = self.a
        dg = self.o.get("diag")
        if dg and dg[0] == nm:
            if dg[1] == 11: self.stamp(11)
            a(f"""s_waitcnt lgkmcnt(0)
s_cmp_eq_u32 s{70+2*dg[1]}, 0
s_cbranch_scc1 L_dg_{nm}_e
s_add_u32 s68, s{70+2*dg[1]}, 2000""")
            if self.o.get("amp"):
                a(f"s_sub_u32 s68, s{70+2*dg[1]}, s70\ns_mul_i32 s68, s68, {self.o['amp']}\ns_add_u32 s68, s68, s70\ns_add_u32 s68, s68, 1000")
            a.label(f"L_dg_{nm}")
            a(f"""s_sleep 4
s_memrealtime s[66:67]
s_waitcnt lgkmcnt(0)
s_sub_u32 s66, s66, s68
s_cmp_lt_i32 s66, 0
s_cbranch_scc1 L_dg_{nm}""")
            a.label(f"L_dg_{nm}_e")
        if self.stamps in (1, 2): a("s_branch L_stampout")
        else: a("s_endpgm")
    def until(self, n):
        assert self.stamps
        self.nu = getattr(self, "nu", 0) + 1
        self.a(f"s_add_u32 s94, s70, {n}\nL_un{self.nu}:\ns_sleep 1\ns_memrealtime s[66:67]\ns_waitcnt lgkmcnt(0)\ns_sub_u32 s66, s66, s94\ns_cmp_lt_i32 s66, 0\ns_cbranch_scc1 L_un{self.nu}")
    def kargs(self, epoch=True):
        self.a("s_waitcnt lgkmcnt(0)")
        self.stamp(1)
        if epoch: self.a(f"s_load_dword s{S_TAG}, s[{S_WS}:{S_WS+1}], 0")
    def frange(self):
        fb = self.o.get("fbase", (10, 26, 0, 16, 32, 42, 52, 62) if self.nf == NF else [sum(self.nfr[:i]) for i in range(8)])
        assert sorted(f + k for f, n in zip(fb, self.nfr) for k in range(n)) == list(range(72))
        lo = sum(v << (8*i) for i, v in enumerate(fb[:4])); hi = sum(v << (8*i) for i, v in enumerate(fb[4:]))
        cn = sum(v << (4*i) for i, v in enumerate(self.nf))
        assert max(self.nf) <= 12 and max(self.nfr[:self.nH]) <= 16 - self.ex and not set(self.nf[:self.nH]) & set(self.nf[self.nH:])
        self.a(f"""s_mov_b32 s60, {hex(lo)}
s_mov_b32 s61, {hex(hi)}
s_lshl_b32 s59, s{S_XCD}, 3
s_lshr_b64 s[60:61], s[60:61], s59
s_and_b32 s60, s60, 0xff
s_lshl_b32 s59, s{S_XCD}, 2
s_lshr_b32 s61, {hex(cn)}, s59
s_and_b32 s61, s61, 15
{self.seln(59, lambda n: min(65536 // n + 1, 32767))}""")
    def seln(self, d, f):
        ns = sorted(set(self.nf))
        L = f"s_movk_i32 s{d}, {f(ns[0])}"
        for n in ns[1:]:
            if any(f(m) != f(n) for m in ns if m < n): L += f"\ns_cmp_eq_u32 s61, {n}\ns_cselect_b32 s{d}, {f(n)}, s{d}"
        return L
    def par(self, name, dflt):
        v = dict(dflt); v.update(self.o.get(name, {}))
        return lambda n: v[n]
    def c3(self):
        c3s = self.o.get("c3s", 0)
        self.frange()
        self.a(f"""s_cmp_lt_u32 s{S_XCD}, {self.nH}
s_cselect_b32 s65, {16 + self.ex}, 16
s_mul_i32 s65, s65, s{S_WAVE}
s_add_u32 s65, s65, s{S_SLOT}
{self.seln(51, lambda n: 2*(9 - c3s - (0 if self.o.get('cgux') else self.cgu(n)) - min(self.pgu(n), self.o.get('pgu0', 9))))}
s_sub_u32 s54, 3, s60
s_and_b32 s54, s54, 7
s_cmp_ge_u32 s65, s51
s_cselect_b32 s56, 8, 0
s_cselect_b32 s57, s51, 0
s_add_u32 s54, s54, s56
s_sub_u32 s57, s65, s57
s_cmp_lt_u32 s57, s51
s_cselect_b32 s54, s54, 99
s_cmp_lt_u32 s54, s61
s_cselect_b64 s[52:53], -1, 1
s_cselect_b32 s54, s54, 0
s_cselect_b32 s57, s57, 0
s_add_u32 s54, s54, s60
s_lshl_b32 s54, s54, 7
s_andn2_b32 s56, s57, 1
s_add_u32 s56, s56, {2*c3s}
{'s_sub_u32 s56, s56, 2' if self.RE == 16 else ''}
{'s_cselect_b32 s56, 16, s56' if self.RE == 16 else ''}
s_mul_i32 s56, s56, 9216
s_add_u32 s54, s54, s56
v_and_b32 v4, 31, v1
v_mul_u32_u24 v4, 18, v4
v_lshrrev_b32 v5, 5, v1
v_add_u32 v4, v4, v5
v_mul_u32_u24 v4, 9216, v4
v_add_u32 v4, s54, v4
s_bitcmp0_b32 s57, 0
s_cselect_b64 s[56:57], s[{S_WG}:{S_WG+1}], s[{S_WU}:{S_WU+1}]
s_mov_b64 exec, s[52:53]
global_load_dword v254, v4, s[56:57]
s_mov_b64 exec, -1""")
    def lnbars(self, nm, n=1):
        self.a(f"s_cmp_eq_u32 s{S_NOLN}, 0\ns_cbranch_scc1 L_lb_{nm}\n" + "s_barrier\n"*n + f"L_lb_{nm}:")

    def entry(self):
        a = self.a
        a.raw(f"""; @launch grid=(256,1,1) block=(512,1,1) lds={self.o.get("lds", LDS_BYTES)}
.amdgcn_target "amdgcn-amd-amdhsa--gfx950"
.text
.globl {NAME}_kernel
.p2align 8
.type {NAME}_kernel,@function
{NAME}_kernel:""")
        self.stamp(0)
        a(f"""s_load_dwordx16 s[4:19], s[0:1], 0
s_load_dwordx16 s[20:35], s[0:1], 64
s_load_dwordx2 s[36:37], s[0:1], 128
v_lshrrev_b32 v2, 6, v0
s_lshr_b32 s{S_SLOT}, s2, 3
v_readfirstlane_b32 s{S_WAVE}, v2
v_and_b32 v1, 63, v0
s_and_b32 s{S_XCD}, s2, 7""")
        if self.stamps == 1:
            for i in range(1, 12): a(f"s_mov_b32 s{70+2*i}, 0")
        if self.stamps == 3 and self.o["diag"][1]: a(f"s_mov_b32 s{70+2*self.o['diag'][1]}, 0")
        X, W = 72, 84
        lnmap = f"s_andn2_b32 s42, s2, 15\ns_lshl1_add_u32 s42, s{S_XCD}, s42\ns_and_b32 s43, s{S_SLOT}, 1\ns_add_u32 s42, s42, s43\ns_lshl_b32 s42, s42, 3" if self.o.get("lnx", 1) else "s_lshl_b32 s42, s2, 3"
        a(f"""s_cmp_ge_u32 s2, 256
s_cbranch_scc1 L_exit0
s_cmp_lt_u32 s{S_XCD}, {self.nH}
s_cselect_b32 s43, {16 + self.ex}, 16
s_sub_u32 s{S_R}, s{S_SLOT}, s43
s_lshl4_add_u32 s62, s{S_XCD}, s{S_SLOT}
s_lshl{self.ex.bit_length() - 1}_add_u32 s43, s{S_XCD}, s{S_SLOT}
s_add_u32 s43, s43, 112
s_cmp_lt_u32 s{S_SLOT}, 16
s_cselect_b32 s62, s62, s43
s_cmp_lt_u32 s{S_WAVE}, 4
s_cbranch_scc1 L_lo
{lnmap}
v_lshrrev_b32 v3, 5, v0
v_add3_u32 v3, s42, v3, -8
v_mul_u32_u24 v4, 1152, v3
v_and_b32 v5, 31, v1
v_lshlrev_b32 v8, 4, v5
v_lshlrev_b32 v9, 2, v5
v_add_u32 v6, v8, v4
v_add_u32 v4, v9, v4""")
        self.kargs(epoch=False)
        a(f"""global_load_dwordx4 {vr(X,4)}, v6, s[{S_X}:{S_X+1}]
global_load_dwordx4 {vr(X+4,4)}, v6, s[{S_X}:{S_X+1}] offset:512
global_load_dword v{X+8}, v4, s[{S_X}:{S_X+1}] offset:1024
global_load_dwordx4 {vr(W,4)}, v8, s[{S_WR}:{S_WR+1}]
global_load_dwordx4 {vr(W+4,4)}, v8, s[{S_WR}:{S_WR+1}] offset:512
global_load_dword v{W+8}, v9, s[{S_WR}:{S_WR+1}] offset:1024
s_load_dword s{S_TAG}, s[{S_WS}:{S_WS+1}], 0
s_branch L_ln2""")
        a.label("L_exit0")
        a("s_endpgm")
        a.label("L_lo")
        a(f"s_cmp_ge_i32 s{S_R}, 0\ns_cbranch_scc1 L_roles")
        a.label("L_conv")
        a(f"""s_getpc_b64 s[42:43]
s_and_b32 s44, s{S_SLOT}, 15
s_lshl2_add_u32 s44, s44, s{S_WAVE}
s_mul_i32 s44, s44, 5
v_add_u32 v4, s44, v1
v_min_u32 v4, (L_codeend-L_conv-256)/128, v4
v_lshlrev_b32 v4, 7, v4
v_mov_b32 v5, 0
v_lshl_add_u64 v[4:5], v[4:5], 0, s[42:43]
s_mov_b64 exec, 31
global_load_dword v255, v[4:5], off offset:128
s_mov_b64 exec, -1
s_lshl_b32 s63, s62, 3
s_lshl_b32 s43, s62, 8
v_add_lshl_u32 v2, v0, s43, 2
v_mov_b32 v4, {L_TAG}
ds_write_b32 v4, v5 offset:4""".replace("v4, v5 off", "v4, v6 off").replace("v_mov_b32 v4, " + str(L_TAG), "v_mov_b32 v6, 0\nv_mov_b32 v4, " + str(L_TAG)))
        if self.wgp: a("ds_write_b32 v4, v6 offset:8")
        self.kargs(epoch=False)
        a(f"s_load_dwordx2 s[44:45], s[{S_LDT}:{S_LDT+1}], s63")
        a("s_nop 15\n" * self.o.get("wi_pdel", 0))
        for k in range(6): a(f"global_load_dword v{140+k}, v2, s[{6+2*k}:{7+2*k}]")
        a("s_barrier")
        if self.o.get("hearly"):
            a(f"s_cmp_ge_u32 s{S_XCD}, {self.o['hearly'][0]}\ns_cbranch_scc1 L_low")
            self.strip(self.o["hearly"][1], 254)
        a("s_branch L_low")
        a.label("L_roles")
        if self.wgp: a(f"v_mov_b32 v6, 0\nv_mov_b32 v4, {L_TAG}\nds_write_b32 v4, v6 offset:8\ns_waitcnt lgkmcnt(0)\ns_barrier")
        self.kargs()
        a(f"s_mov_b32 s{S_NOLN}, 1")
        if not self.o.get("gnow"): self.mktag()
        a("s_branch L_roles2")
    def strip(self, halves, dst):
        both = len(halves) == 2
        rx = 256 // self.ex
        assert not (both and rx > 32)
        self.a(f"""s_and_b32 s56, s{S_SLOT}, 15
s_and_b32 s57, s{S_WAVE}, 3
s_lshl2_add_u32 s56, s56, s57
s_cmp_lt_u32 s{S_SLOT}, 16
s_cselect_b32 s57, 16, {rx}
s_cselect_b64 s[66:67], 0xffff, {'-1' if rx >= 32 else '0xffff'}
s_mul_i32 s56, s56, s57
s_add_u32 s56, s56, {1024*halves[0]}
v_and_b32 v5, {31 if rx <= 32 else 63}, v1
v_add_u32 v5, s56, v5
{'v_lshrrev_b32 v4, 5, v1' if both else ''}
{'v_lshl_add_u32 v5, v4, 10, v5' if both else ''}
v_mul_u32_u24 v5, 1152, v5
s_lshr_b32 s56, s62, 4
s_lshl_b32 s56, s56, 7
v_add_u32 v5, s56, v5
s_mov_b32 exec_lo, s66
s_mov_b32 exec_hi, {'s66' if both else 's67' if rx > 32 else '0'}
global_load_dword v{dst}, v5, s[{S_X}:{S_X+1}]
s_mov_b64 exec, -1""")

    def ln(self):
        a = self.a
        X, W = 72, 84
        S1, S2, S3, S4 = 48, 49, 50, 51
        a.label("L_ln2")
        if self.wgp: a("s_barrier")
        a(f"""s_cmp_lt_i32 s{S_R}, 0
s_cbranch_scc1 {'L_ln4' if self.wgp else 'L_ln3'}
s_cmp_eq_u32 s{S_WAVE}, {7 if self.o.get("xearly", 1) else 99}
s_cbranch_scc1 {'L_lnx' if self.o.get("xearly", 1) else 'L_ln4'}
s_branch L_ln4
L_ln3:
s_barrier""")
        a.label("L_ln4")
        self.lnbody(0)
        a(f"s_cmp_lt_i32 s{S_R}, 0\ns_cbranch_scc1 L_helper")
        if self.ls: a(f"v_mov_b32 v2, {L_TAGR}\nds_write_b32 v2, v59\ns_waitcnt lgkmcnt(0)")
        a("s_barrier")
    def lnx(self):
        a = self.a
        a.label("L_lnx")
        self.frange()
        a(f"""s_cmp_ge_u32 s{S_R}, s61
s_cbranch_scc1 L_ln4
s_add_u32 s42, s60, s{S_R}
s_mul_i32 s45, s42, {64*1152}
v_lshrrev_b32 v4, 4, v1
v_mul_u32_u24 v4, 1152, v4
v_and_b32 v5, 15, v1
v_lshl_add_u32 v4, v5, 3, v4
v_add_u32 v4, s45, v4""")
        if self.o.get("xdel", 0): a("s_waitcnt lgkmcnt(0)")
        for k in range(16):
            if k: a("v_add_u32 v4, 4608, v4")
            a(f"global_load_dwordx2 {vr(168+2*k,2)}, v4, s[{S_WD}:{S_WD+1}] offset:1024")
        self.lnbody(16)
        a("s_barrier\ns_branch L_roles2")
    def lnbody(self, ex):
        a = self.a
        X, W = 72, 84
        S1, S2, S3, S4 = 48, 49, 50, 51
        a(f"""s_setprio 3
v_mov_b32 v46, 0x3f803f80
v_lshlrev_b32 v3, 3, v3
v_add_u32 v3, {WS_STATS - 8}, v3
s_mov_b32 s{S_NOLN}, 0""")
        if self.wgp:
            a(f"""s_lshl_b32 s43, s{S_WAVE}, 4
s_add_u32 s43, s43, {L_GR - 64}
v_mov_b32 v62, s43
v_mov_b32 v63, {L_TAG}
v_lshlrev_b32 v47, 4, v1
v_add_u32 v45, {L_GR}, v47
v_readfirstlane_b32 s43, v3
s_add_u32 s43, s43, 8
s_andn2_b32 s43, s43, 63
v_add_u32 v47, s43, v47""")
        self.mktag()
        a(f"v_mov_b32 v59, s{S_TAG}")
        for l in self.ptags(48, 52): a(l)
        c = lambda j, r: "0" if j == 0 else f"v{r}"
        for j in range(9):
            if j % 4 == 0: a(f"s_waitcnt vmcnt({5 - j//4 + ex})")
            if j == 0: self.stamp(9)
            a(f"v_dot2_f32_bf16 v{S1}, v{X+j}, v46, {c(j, S1)}\nv_dot2_f32_bf16 v{S2}, v{X+j}, v{X+j}, {c(j, S2)}")
        for j in range(9):
            if j % 4 == 0: a(f"s_waitcnt vmcnt({2 - j//4 + ex})")
            a(f"v_dot2_f32_bf16 v{S4}, v{W+j}, v46, {c(j, S4)}\nv_dot2_f32_bf16 v{S3}, v{X+j}, v{W+j}, {c(j, S3)}")
        for sh in ("row_ror:8 row_mask:0xf", "row_ror:4 row_mask:0xf", "row_ror:2 row_mask:0xf", "row_ror:1 row_mask:0xf", "row_bcast:15 row_mask:0xa"):
            for r in (S1, S2, S4, S3):
                a(f"v_add_f32_dpp v{r}, v{r}, v{r} {sh} bank_mask:0xf")
        a(f"""v_mul_f32 v{S1}, 0x3ae38e39, v{S1}
v_mul_f32 v{S2}, 0x3ae38e39, v{S2}
v_fma_f32 v{S2}, -v{S1}, v{S1}, v{S2}
v_max_f32 v{S2}, 0, v{S2}
v_cvt_pk_bf16_f32 v52, v{S1}, v{S2}
v_lshlrev_b32 v54, 16, v52
v_and_b32 v52, {HI}, v52
v_add_f32 v52, 0x3727c5ac, v52
v_cvt_pk_bf16_f32 v52, v52, v52
v_and_b32 v52, {HI}, v52
v_sqrt_f32 v52, v52
v_fma_f32 v{S3}, -v54, v{S4}, v{S3}
v_cvt_pk_bf16_f32 v56, v{S1}, v52
v_and_b32 v53, {HI}, v56
v_rcp_f32 v53, v53
v_mov_b32 v57, v56
v_mul_f32 v{S3}, v{S3}, v53
v_cvt_pk_bf16_f32 v55, v{S3}, v{S3}
v_ashrrev_i32 v61, 31, v55
v_or_b32 v61, 0x80008000, v61
v_xor_b32 v60, v55, v61
v_xor_b32 v55, v55, v61
v_permlane32_swap_b32 v56, v57
s_mov_b32 s43, 0x07060100
v_permlane32_swap_b32 v55, v60
s_mov_b32 exec_lo, 0
s_mov_b32 exec_hi, 0x10000
v_perm_b32 v58, v60, v55, s43""")
        if self.wgp:
            a(f"""ds_write_b128 v62, v[56:59]
ds_add_rtn_u32 v60, v63, v46 offset:8
s_mov_b64 exec, 15
s_waitcnt lgkmcnt(0)
v_readlane_b32 s43, v60, 48
s_cmp_lg_u32 s43, {(3*0x3f803f80) & 0xffffffff}
s_cbranch_scc1 L_np{ex}
ds_read_b128 v[52:55], v45
s_waitcnt lgkmcnt(0)
global_store_dwordx4 v47, v[52:55], s[{S_WS}:{S_WS+1}] sc1
v_mov_b32 v60, 4
s_mov_b64 exec, 1
ds_write_b32 v63, v60 offset:4
L_np{ex}:""")
        else: a(f"global_store_dwordx4 v3, v[56:59], s[{S_WS}:{S_WS+1}] sc1")
        a("s_mov_b64 exec, -1")
        self.stamp(10)
        a("s_setprio 0")

    def dtcalc(self, slo, dst, t):
        self.a(f"""s_bitcmp0_b32 s{S_WAVE}, 1
s_cselect_b32 s{slo}, s{slo}, s{slo+1}
s_lshl_b32 s{slo+1}, s{slo}, 16
s_and_b32 s{slo}, s{slo}, {HI}
s_bitcmp0_b32 s{S_WAVE}, 0
s_cselect_b32 s{slo}, s{slo+1}, s{slo}
v_mov_b32 v{dst}, {LOG2E}
v_mul_f32 v{t}, s{slo}, v{dst}
v_fma_f32 v{dst}, s{slo}, v{dst}, -v{t}
v_mov_b32 v{dst+1}, 0x32a5705f
v_fma_f32 v{dst}, s{slo}, v{dst+1}, v{dst}
v_exp_f32 v{t}, v{t}
v_mul_f32 v{dst}, 0x3f317218, v{dst}
v_fma_f32 v{t}, v{t}, v{dst}, v{t}
v_cvt_pk_bf16_f32 v{t}, v{t}, v{t}
v_and_b32 v{dst}, {HI}, v{t}""")
    def hbands(self):
        L = f"""v_and_b32 v240, 15, v1
v_lshrrev_b32 v241, 1, v1
v_and_b32 v241, 24, v241
s_mov_b32 s51, 0x05040100
"""
        for rnd in range(2):
            if rnd == 0: L += f"s_and_b32 s56, s{S_WAVE}, 3\ns_mov_b32 s53, 0x3f803f80\n"
            else: L += f"s_and_b32 s56, s{S_WAVE}, 1\ns_cselect_b32 s53, -1, s53\ns_or_b32 s56, s56, 4\n"
            L += f"""s_lshl_b32 s57, s56, 2
s_lshr_b32 s49, 0xc4536b, s57
s_lshr_b32 s58, 0x297353, s57
s_and_b32 s49, s49, 15
s_and_b32 s58, s58, 15
s_bfm_b32 s49, s58, s49
s_lshl_b32 s56, s56, 10
s_add_u32 s56, s56, {L_B}
v_lshlrev_b32 v242, v240, s49
v_lshrrev_b32 v242, v241, v242
v_lshl_add_u32 v245, v1, 4, s56
"""
            for e in range(4):
                L += f"v_bfe_i32 v243, v242, {2*e}, 1\nv_bfe_i32 v244, v242, {2*e+1}, 1\nv_perm_b32 v243, v244, v243, s51\nv_and_b32 v{248+e}, s53, v243\n"
            L += "ds_write_b128 v245, v[248:251]\n"
        return L

    DK = 224
    def kaddr(self):
        self.a(f"""s_and_b32 s50, s{S_WAVE}, 3
s_lshl_b32 s50, s50, 9
s_lshr_b32 s51, s{S_WAVE}, 2
s_lshl_b32 s51, s51, 8
s_add_u32 s50, s50, s51
s_mov_b32 m0, s50
v_mov_b32 v209, 0x3f80
ds_write_addtid_b32 v209
{'' if self.ks else 'ds_write_addtid_b32 v209 offset:256'}
v_and_b32 v200, 31, v1
v_lshrrev_b32 v201, 5, v1
v_mul_u32_u24 v208, {STG_ROW}, v200
v_lshl_add_u32 v208, v201, 4, v208
v_add_u32 v208, s50, v208
v_add_u32 v209, {STG_HI}, v208""")
    def kgen1(self):
        a = self.a
        PR = 140
        DTV = 148
        DK = 224
        FR = 4
        FR1 = 136
        def kmf(A, B, idk, first):
            self.dswait(idk)
            a(".p2align 3")
            a(f"v_mfma_f32_32x32x16_bf16 {vr(DK,16)}, {vr(A,4)}, {vr(B,4)}, {'0' if first else vr(DK,16)}")
        ids0, ids1 = {}, []
        FL1 = [68, 72, 116, 120, 124, 128, 132, 136]
        def kpass(p, extra, mf=None):
            P = 150
            e = a
            for k in range(6):
                e(f"v_lshlrev_b32 v{P+k}, 16, v{PR+k}" if p == 0 else f"v_and_b32 v{P+k}, {HI}, v{PR+k}")
            A1, A8, A256, T, Z, R, CV = 156, 158, 160, 162, 76, 94, 164
            e(f"v_pk_mul_f32 {vr(P,2)}, {vr(P,2)}, {vr(DTV,2)} op_sel_hi:[1,0]")
            e(f"v_mul_f32 v{P}, {LOG2E}, v{P}")
            e(f"v_mul_f32 v{P+1}, {INV2PI}, v{P+1}")
            ev = ((A8, "0x41000000", 186), (A1, None, 190), (A256, "0x43800000", 194))
            for dst, mul, t in ev:
                if mul:
                    e(f"v_mul_f32 v{t}, {mul}, v{P}\nv_mul_f32 v{t+1}, {mul}, v{P+1}\nv_exp_f32 v{t}, v{t}\nv_fract_f32 v{t+1}, v{t+1}")
                else:
                    e(f"v_exp_f32 v{t}, v{P}\nv_fract_f32 v{t+1}, v{P+1}")
                e(f"v_cos_f32 v{dst}, v{t+1}\nv_sin_f32 v{dst+1}, v{t+1}")
            if p == 1: e(f"s_add_u32 s52, s50, 256\ns_mov_b32 m0, s52")
            a(".p2align 3")
            self.cmul(Z, P+4, P+2, T)
            for dst, _, t in ev:
                e(f"v_pk_mul_f32 {vr(dst,2)}, {vr(dst,2)}, {vr(t,2)} op_sel_hi:[1,0]")
            e(f"v_pk_mul_f32 {vr(Z,2)}, {vr(Z,2)}, {vr(DTV,2)} op_sel:[0,1] op_sel_hi:[1,1] neg_hi:[0,1]")
            pend = []
            KB = self.o.get("kb", 4)
            def flushb():
                if mf and len(ids0) == 16: mf.pop(0)()
                for i, (src, off) in enumerate(pend): e(f"v_cvt_pk_bf16_f32 v{CV+i}, v{src}, v{src+1}")
                for i, (src, off) in enumerate(pend): self.ds(f"ds_write_addtid_b32 v{CV+i} offset:{off}")
                pend.clear()
                for _ in range(3):
                    if extra: extra.pop(0)()
            def put(src, off):
                pend.append((src, off))
                if len(pend) == KB: flushb()
            ri = 0
            def nxtr():
                nonlocal ri
                r = R + 2*(ri % 10); ri += 1; return r
            put(A8, STG_ROW)
            prev = A8
            for j in range(2, 32):
                d = nxtr(); self.cmul(d, prev, A8, T); put(d, j*STG_ROW); prev = d
            if pend: flushb()
            e(f"s_add_u32 s52, s50, {STG_M0 + 256*p}\ns_mov_b32 m0, s52\n.p2align 3")
            if p == 1: extra += [(lambda i=i: ids1.append(self.ds(f"ds_read_b128 {vr(FL1[i],4)}, v208 offset:{256 + 32*i}"))) for i in range(8)]
            hi = lambda row: STG_HI - STG_M0 + row*STG_ROW
            put(Z, hi(20))
            for k in range(1, 9):
                self.cmul(Z + 2*k, Z + 2*k - 2, A1, T, True); put(Z + 2*k, hi(k - 1))
            cur = {2: Z+4, 4: Z+8, 6: Z+12, 8: Z+16}
            for (z, row) in ((2, 8), (4, 9), (6, 10), (8, 11), (4, 12), (8, 13), (4, 14), (8, 15), (8, 16), (8, 17), (8, 18), (8, 19)):
                d = nxtr(); self.cmul(d, cur[z], A256, T, True); cur[z] = d; put(d, hi(row))
            if pend: flushb()
            while extra: extra.pop(0)()
        self.dsq = []
        kpass(0, [])
        def rd0(i):
            def f(): ids0[i] = self.ds(f"ds_read_b128 {vr(FR+4*i,4)}, v{208 if i & 1 else 209} offset:{32*(i>>1)}")
            return f
        for i in range(4): rd0(i)()
        mf = [(lambda kk=kk: kmf(FR+8*kk, FR+8*kk+4, ids0[2*kk+1], kk == 0)) for kk in range(8)]
        kpass(1, [rd0(i) for i in range(4, 16)], mf)
        idh = [self.ds(f"ds_read_b128 {vr(168+4*i,4)}, v209 offset:{256 + 32*i}") for i in range(8)]
        self.stamp(8)
        a("; mark K1")
        while mf: mf.pop(0)()
        setup = self.setup + [f"s_waitcnt vmcnt({self.npf})", "v_mul_u32_u24 v207, v207, v201", "v_lshlrev_b32 v207, 16, v207", f"v_mul_f32 v207, {LN2SQ}, v207"]
        def shadow(n):
            for _ in range(n):
                if setup: a(setup.pop(0))
        shadow(12)
        for kk in range(8):
            kmf(168+4*kk, FL1[kk], idh[kk], False)
            shadow(5)
        shadow(99)

    def helper(self):
        a = self.a
        o = self.o
        a.label("L_helper")
        XG, ST, AD = 10, 26, 64
        a(f"""v_mov_b32 v42, {L_TAG}
v_mov_b32 v4, 1
s_mov_b64 exec, 1
ds_write_b32 v42, v59
{'' if self.wgp else 'ds_add_u32 v42, v4 offset:4'}
s_mov_b64 exec, -1
s_lshl_b32 s63, s62, 3
v_add_u32 v8, 0xffffff00, v0
v_mul_u32_u24 v{AD}, 2304, v8
v_add_u32 v{AD}, s63, v{AD}
v_add_u32 v{AD+1}, 1152, v{AD}""")
        for cc in (1, 2, 3): a(f"v_add_u32 v{AD+2*cc}, {cc*512*1152}, v{AD}\nv_add_u32 v{AD+2*cc+1}, {cc*512*1152}, v{AD+1}")
        dnc, cgu, pgu = self.dnc, self.cgu, self.pgu
        XF, Z, G, TMP = 72, 104, 136, 168
        gq = [(c, r) for c in range(4) for r in range(2)]
        nv = [0]
        vid = {}
        def vm(name, text):
            a(text); nv[0] += 1; vid[name] = nv[0]
        def vwait(name): a(f"s_waitcnt vmcnt({nv[0] - vid[name]})")
        def sl(c, f): f(f"global_load_dwordx4 {vr(ST+4*c,4)}, v{2 + (c >> 1)}, s[{S_WS}:{S_WS+1}] offset:{4096*(c & 1) - 4096} sc1")
        def unpack(c):
            xf, xg = XF+8*c, XG+4*c
            vwait(("g", c))
            for ch in range(4):
                for r in range(2):
                    src = xg + 2*r + (ch >> 1)
                    a(f"v_lshlrev_b32 v{xf+2*ch+r}, 16, v{src}" if ch % 2 == 0 else f"v_and_b32 v{xf+2*ch+r}, s48, v{src}")
        def tok(t):
            if t == "fr":
                self.frange()
                a(f"""s_cmp_lt_u32 s{S_XCD}, {self.nH}
s_cselect_b32 s42, {16 + self.ex}, 16
s_sub_u32 s43, s{S_WAVE}, 4
s_mul_i32 s43, s43, s42
s_add_u32 s65, s43, s{S_SLOT}""")
            elif t == "DN":
                for k, (vd, sm) in enumerate(((62, 54), (46, 50))):
                    a(f"""{self.seln(42, dnc)}
s_mul_i32 s43, s61, 9
s_sub_u32 s43, s43, s42
{f's_cmp_lt_u32 s{S_XCD}, {self.nH}' if k else ''}
{f's_cselect_b32 s46, {64 + 4*self.ex}, 64' if k else 's_mov_b32 s46, 0'}
s_add_u32 s46, s46, s65
s_cmp_lt_u32 s46, s42
s_cselect_b64 s[{sm}:{sm+1}], -1, 1
s_cselect_b32 s46, s46, 0
s_add_u32 s43, s43, s46
s_min_u32 s43, s43, 53
s_cselect_b32 s43, s43, s43
s_mul_i32 s46, s43, s59
s_lshr_b32 s46, s46, 16
s_mul_i32 s47, s46, s61
s_sub_u32 s43, s43, s47
s_add_u32 s43, s43, s60
s_mul_i32 s43, s43, 576
s_lshl_b32 s46, s46, 6
s_add_u32 s43, s43, s46
v_add_lshl_u32 v{vd}, v1, s43, 7""".replace("s_min_u32 s43, s43, 53\ns_cselect_b32 s43, s43, s43\n", ""))
            elif t == "dn": vm("dn", f"s_mov_b64 exec, s[54:55]\nglobal_load_dword v47, v62, s[{S_WD}:{S_WD+1}]\ns_mov_b64 exec, -1")
            elif t == "dn2": vm("dn", f"s_mov_b64 exec, s[50:51]\nglobal_load_dword v47, v46, s[{S_WD}:{S_WD+1}]\ns_mov_b64 exec, -1")
            elif t == "GU":
                a(f"""{self.seln(42, lambda n: 2*n*cgu(n))}
{self.seln(45, lambda n: self.RE - 2*(cgu(n) + pgu(n)))}
s_cmp_lt_u32 s65, s42
s_cselect_b32 s43, s65, 0
s_cselect_b64 s[68:69], -1, 1
s_mul_i32 s44, s43, s59
s_lshr_b32 s44, s44, 16
s_mul_i32 s42, s44, s61
s_sub_u32 s42, s43, s42
v_lshl_add_u32 v4, s42, 6, v1
v_mul_u32_u24 v5, s59, v4
v_lshrrev_b32 v5, 16, v5
v_mul_u32_u24 v6, s61, v5
v_sub_u32 v6, v4, v6
v_and_b32 v7, 31, v5
v_lshrrev_b32 v5, 5, v5
v_mul_u32_u24 v7, 18, v7
s_andn2_b32 s42, s44, 1
s_add_u32 s42, s42, s45
s_min_u32 s42, s42, 16
v_add3_u32 v5, v5, v7, s42
v_mul_u32_u24 v5, 9216, v5
v_add_u32 v6, s60, v6
v_lshl_add_u32 v63, v6, 7, v5
s_bitcmp0_b32 s44, 0
s_cselect_b64 s[44:45], s[{S_WG}:{S_WG+1}], s[{S_WU}:{S_WU+1}]""")
            elif t == "gu": vm("gu", "s_mov_b64 exec, s[68:69]\nglobal_load_dword v47, v63, s[44:45]\ns_mov_b64 exec, -1")
            elif t == "S":
                a(f"""v_lshlrev_b32 v2, 4, v8
v_add_u32 v2, {WS_STATS+4096}, v2
v_add_u32 v3, 8192, v2
v_lshlrev_b32 v9, 2, v8
v_lshrrev_b32 v42, 7, v8
v_mul_u32_u24 v42, {Y_T}, v42
v_bfe_u32 v43, v8, 1, 2
v_mul_u32_u24 v43, 320, v43
v_add_u32 v42, v42, v43
v_bfe_u32 v43, v8, 3, 4
v_lshl_add_u32 v42, v43, 4, v42
v_and_b32 v43, 1, v8
v_add_u32 v8, {L_U+512}, v9
v_lshl_add_u32 v9, v43, 3, v42
s_mov_b32 s48, {HI}""")
            elif t == "B": a(self.hbands())
            elif t == "g":
                c, r = gq.pop(0)
                vm(("g", c), f"global_load_dwordx2 {vr(XG+4*c+2*r,2)}, v{AD+2*c+r}, s[{S_X}:{S_X+1}]")
            elif t == "ws": vwait("s")
            elif t == "hy":
                a("s_mov_b32 s42, 0")
                a.label("L_hsync")
                a(f"""ds_read_b32 v4, v42 offset:4
s_add_u32 s42, s42, 1
s_cmp_ge_u32 s42, {SPIN}
s_cbranch_scc1 L_hs_out
s_waitcnt lgkmcnt(0)
v_cmp_ne_u32 vcc, 4, v4
s_cbranch_vccnz L_hsync""")
                a.label("L_hs_out")
            elif t in ("s0", "s1", "s01"):
                self.strip([int(x) for x in t[1:]], 61); nv[0] += 1; vid["s"] = nv[0]
            elif t == "wa": a("s_waitcnt vmcnt(0)")
            elif t[0] == "w": vwait(("g", int(t[1])))
            elif t[0] == "u": unpack(int(t[1]))
            elif t == "p":
                for c in range(4): sl(c, lambda x: vm("st", x))
            elif t[0] == "z": a(f"s_sleep {t[1:]}")
            elif t[0] == "@": self.stamp(int(t[1:]))
            else: raise ValueError(t)
        hs = o.get("hs", "hy @2 g g g g S B w1 @6 p s1 u0 u1 @3 | g | g | | g | g | |").split("|")
        ev = lambda n: [tok(t) for t in hs[n].split()]
        ev(0)
        self.stamp(4)
        a(f"s_setprio {o.get('hp1', 3)}\ns_mov_b32 s49, {NLOG2E}\ns_mov_b32 s42, 0")
        def schk():
            a(f"""v_cmp_ne_u32 s[56:57], s{S_TAG}, v{ST+3}
v_cmp_ne_u32 s[58:59], s{S_TAG}, v{ST+7}
v_cmp_ne_u32 s[60:61], s{S_TAG}, v{ST+11}
v_cmp_ne_u32 vcc, s{S_TAG}, v{ST+15}
s_or_b64 s[56:57], s[56:57], s[58:59]
s_or_b64 s[60:61], s[60:61], vcc
s_or_b64 vcc, s[56:57], s[60:61]""")
        vwait("st")
        schk()
        a("s_cbranch_vccnz L_pollA")
        a.label("L_pollA_done")
        self.stamp(5)
        ev(1)
        def prep(c, pk):
            xf, z, st = XF+8*c, Z+8*c, ST+4*c
            m, rs, xn = TMP, TMP+2, TMP+4
            a(f"""v_and_b32 v{rs}, s48, v{st}
v_and_b32 v{rs+1}, s48, v{st+1}
v_rcp_f32 v{rs}, v{rs}
v_rcp_f32 v{rs+1}, v{rs+1}
v_lshlrev_b32 v{m}, 16, v{st}
v_lshlrev_b32 v{m+1}, 16, v{st+1}
v_mul_f32 v{rs}, s49, v{rs}
v_mul_f32 v{rs+1}, s49, v{rs+1}
v_mul_f32 v{m}, v{m}, v{rs}
v_mul_f32 v{m+1}, v{m+1}, v{rs+1}""")
            for ch in range(4):
                if pk: a(f"v_pk_fma_f32 {vr(z+2*ch,2)}, {vr(xf+2*ch,2)}, {vr(rs,2)}, {vr(m,2)} neg_lo:[0,0,1] neg_hi:[0,0,1]")
                else:
                    for r in range(2): a(f"v_fma_f32 v{z+2*ch+r}, v{xf+2*ch+r}, v{rs+r}, -v{m+r}")
                a(f"v_cvt_pk_bf16_f32 v{xn+ch}, v{z+2*ch}, v{z+2*ch+1}")
            for ch in range(4): a(f"ds_write_b32 v8, v{xn+ch} offset:{ch*U_ROW + c*1024}")
        def pre(c, pk=False, part=3):
            z, g = Z+8*c, G+8*c
            if part & 1:
                for i in range(8): a(f"v_exp_f32 v{g+i}, v{z+i}")
                if pk:
                    for i in range(0, 8, 2): a(f"v_pk_add_f32 {vr(g+i,2)}, {vr(g+i,2)}, 1.0 op_sel_hi:[1,0]")
                else:
                    for i in range(8): a(f"v_add_f32 v{g+i}, 1.0, v{g+i}")
            if part & 2:
                for i in range(8): a(f"v_rcp_f32 v{g+i}, v{g+i}")
                if pk:
                    for i in range(0, 8, 2): a(f"v_pk_mul_f32 {vr(g+i,2)}, {vr(z+i,2)}, {vr(g+i,2)}")
                else:
                    for i in range(8): a(f"v_mul_f32 v{g+i}, v{z+i}, v{g+i}")
        def post(c, pk=False):
            g, xf = G+8*c, XF+8*c
            y, ou = TMP+8, TMP+16+4*c
            mk = 50 if c == 2 else 66
            if c >= 2 + self.hl: a(f"ds_read_u8 v44, v42 offset:{512*c}\nds_read_u8 v45, v43 offset:{512*c}")
            for ch in range(4): a(f"ds_read_b64 {vr(y+2*ch,2)}, v9 offset:{ch*Y_CH + c*2*Y_T}")
            for ch in range(4):
                a(f"s_waitcnt lgkmcnt({3-ch})")
                if c >= 2 + self.hl and ch == 0: a(f"v_cmp_eq_u32 s[{mk}:{mk+1}], 0, v44\nv_cmp_eq_u32 s[{mk+2}:{mk+3}], 0, v45")
                if pk: a(f"v_pk_fma_f32 {vr(y+2*ch,2)}, {vr(y+2*ch,2)}, {vr(g+2*ch,2)}, {vr(xf+2*ch,2)}")
                else:
                    for r in range(2): a(f"v_fma_f32 v{y+2*ch+r}, v{y+2*ch+r}, v{g+2*ch+r}, v{xf+2*ch+r}")
            for r in range(2):
                a(f"v_cvt_pk_bf16_f32 v{ou+2*r}, v{y+r}, v{y+2+r}\nv_cvt_pk_bf16_f32 v{ou+2*r+1}, v{y+4+r}, v{y+6+r}")
            if c < o.get("sd", 0): return
            if c == o.get("sd", 0):
                for cc in range(c): store(cc)
            store(c)
        def store(c):
            mk, ou = 50 if c == 2 else 66, TMP+16+4*c
            for r in range(2):
                if c >= 2 + self.hl: a(f"s_mov_b64 exec, s[{mk+2*r}:{mk+1+2*r}]")
                st = f"global_store_dwordx2 v{AD+2*c+r}, {vr(ou+2*r,2)}, s[{S_OUT}:{S_OUT+1}]"
                if o.get("wi_ns"):
                    self.nu = getattr(self, "nu", 0) + 1
                    st = f"s_cmp_ge_u32 s62, {o['wi_ns']}\ns_cselect_b64 exec, 1, exec\n{st}\ns_mov_b64 exec, -1"
                if o.get("xnt"):
                    self.nu = getattr(self, "nu", 0) + 1
                    st = f"s_cmp_ge_u32 s62, {o['xnt'][0]}\ns_cbranch_scc1 L_xa{self.nu}\n{st}\ns_branch L_xb{self.nu}\nL_xa{self.nu}:\n{st} {o['xnt'][1]}\nL_xb{self.nu}:"
                vm(("o", c), st + " " + o.get("oflag", ""))
                if c == 2 and not self.hl: a("s_mov_b64 exec, -1")
        early = o.get("early", 1)
        fl = o.get("fl", {})
        def flush(pos):
            cs_ = [c for c, p in fl.items() if p == pos]
            if not cs_: return
            assert self.hl
            a("s_mov_b64 exec, s[64:65]")
            for c in cs_:
                for r in range(2): vm("fl", f"global_store_dwordx2 v{AD+2*c+r}, {vr(TMP+16+4*c+2*r,2)}, s[{S_OUT}:{S_OUT+1}] {o.get('flf', 'nt')}")
            a("s_mov_b64 exec, -1")
        if fl:
            a(f"""s_cmp_lt_u32 s{S_SLOT}, 16
s_cselect_b32 s43, 15, {self.ex - 1}
v_xor_b32 v45, s{S_SLOT}, v1
v_and_b32 v45, s43, v45
v_cmp_eq_u32 s[64:65], 0, v45""")
        xb0 = o.get("xb0", 0)
        prep(0, True)
        if xb0: a("s_waitcnt lgkmcnt(0)\ns_barrier")
        prep(1, not xb0)
        ev(2)
        if early >= 1: pre(0, True)
        if early >= 2: unpack(2); prep(2, True)
        a("s_setprio 0\ns_waitcnt lgkmcnt(0)\ns_barrier")
        a("; mark H0")
        ev(3)
        if early < 1: pre(0)
        else: pre(1)
        ev(4)
        if early < 2: unpack(2); prep(2, False)
        self.stamp(9)
        ev(5)
        assert not gq
        cs = (lambda i: self.stamp(i)) if o.get("cst") else (lambda i: None)
        a("s_waitcnt lgkmcnt(0)"); cs(2); a("s_barrier")
        post(0)
        ev(6)
        unpack(3); prep(3, False)
        if early < 1: pre(1)
        else: pre(2, part=1)
        a("s_waitcnt lgkmcnt(0)"); cs(3); a("s_barrier")
        post(1)
        flush(1)
        ev(7)
        pre(2, part=3 if early < 1 else 2)
        if early >= 1: pre(3, part=1)
        a(f"""v_lshlrev_b32 v42, 1, v0
v_add_u32 v42, {L_MK - 512}, v42
v_xor_b32 v43, 1, v42""")
        cs(6); a("s_barrier")
        post(2)
        flush(2)
        pre(3, part=3 if early < 1 else 2)
        flush(3)
        cs(8)
        a(f"s_barrier\ns_cmp_lt_u32 s{S_WAVE}, 6\ns_cbranch_scc1 L_t6\n{'' if self.hl else 's_waitcnt vmcnt(2)'}\ns_barrier")
        a("; mark H1")
        def last():
            if self.stamps == 1:
                a("s_waitcnt vmcnt(0)")
                self.stamp(7)
        post(3, True)
        if self.hl: a("s_waitcnt vmcnt(2)\ns_barrier")
        last()
        self.finish("helperb")
        a.label("L_t6")
        post(3)
        a("s_barrier\ns_waitcnt vmcnt(2)\ns_barrier" if self.hl else "s_waitcnt vmcnt(4)\ns_barrier")
        last()
        self.finish("helper")
        a.label("L_pollA")
        if o.get("amask", 1): a("s_mov_b64 exec, vcc")
        for c in range(4): sl(c, a)
        a("s_mov_b64 exec, -1\ns_add_u32 s42, s42, 1\ns_waitcnt vmcnt(0)")
        schk()
        a(f"s_cbranch_vccz L_pollA_done\ns_cmp_lt_u32 s42, {SPIN}\ns_cbranch_scc1 L_pollA\ns_branch L_pollA_done")

    def mfma_wave(self):
        a = self.a
        a.label("L_low")
        a("s_mov_b32 s42, s62")
        KF = 4
        FIX = 72
        TF2 = 76
        TF3 = 100
        BAND = 116
        Z2 = 136
        Z3 = 168
        UB, NUB = 184, 8
        DT = 216
        ACC = 240
        PR = 140

        a(f"""s_mul_i32 s48, s{S_WAVE}, {KT_W}
s_add_u32 s48, s48, {L_KT}
s_mul_i32 s49, s{S_WAVE}, {U_ROW}
s_add_u32 s49, s49, {L_U}
v_mov_b32 v4, 0
v_mov_b32 v5, 0
v_mov_b32 v6, 0
v_mov_b32 v7, 0
v_lshl_add_u32 v3, v1, 4, s48
v_lshl_add_u32 v9, v1, 3, s49
ds_write_b128 v3, v[4:7]
ds_write_b128 v3, v[4:7] offset:1024
ds_write_b128 v3, v[4:7] offset:2048
ds_write_b128 v3, v[4:7] offset:{KT_W-1024}
ds_write_b64 v9, v[4:5]
v_lshlrev_b32 v9, 3, v0
v_add_u32 v9, {L_MK}, v9
ds_write_b64 v9, v[4:5]
v_and_b32 v252, 15, v1
v_lshrrev_b32 v253, 4, v1""")
        self.kaddr()
        a(f"v_mov_b32 v207, s63\nv_lshl_add_u32 v207, s{S_WAVE}, 1, v207\nglobal_load_ushort v207, v207, s[{S_DSK}:{S_DSK+1}]")
        setup = f"""v_lshlrev_b32 v210, 4, v8
v_lshl_add_u32 v203, v9, 3, v210
v_sub_u32 v203, s48, v203
v_add_u32 v203, 512, v203
v_lshrrev_b32 v210, 1, v8
v_and_b32 v211, 1, v8
v_lshlrev_b32 v210, 2, v210
v_sub_u32 v210, s48, v210
v_lshl_add_u32 v204, v211, 8, v210
v_lshl_add_u32 v205, v211, 1, v210
v_mov_b32 v206, {TA+60}
s_movk_i32 s52, {TA+1088}
v_writelane_b32 v206, s52, 32
s_movk_i32 s52, {TA+574}
v_writelane_b32 v206, s52, 63
v_add_u32 v206, s48, v206
v_and_b32 v248, 1, v252
v_mul_u32_u24 v248, {TB+2}, v248
v_lshlrev_b32 v210, 1, v252
v_sub_u32 v248, v248, v210
v_lshl_add_u32 v248, v253, 4, v248
v_add3_u32 v248, v248, s48, 32
v_add_u32 v249, 512, v248
v_lshlrev_b32 v250, 2, v252
v_sub_u32 v250, s48, v250
v_lshl_add_u32 v250, v253, 4, v250
v_add_u32 v250, {T2+60}, v250
v_lshlrev_b32 v2, 5, v252
v_lshl_add_u32 v2, v253, 4, v2
v_add_u32 v2, s49, v2
v_mul_u32_u24 v3, 320, v253
v_lshl_add_u32 v3, v252, 4, v3
s_mul_i32 s52, s{S_WAVE}, {Y_CH}
v_add_u32 v3, s52, v3
v_lshlrev_b32 v252, 4, v1
v_add_u32 v252, {L_B}, v252
{'v_and_b32 v251, 1, v1' if self.fm else 'v_and_b32 v251, 7, v1'}
{'v_lshl_add_u32 v251, v251, 2, v253' if self.fm else ''}
v_lshlrev_b32 v251, 4, v251
s_lshr_b32 s52, s42, 1
s_and_b32 s53, s42, 1
s_and_b32 s54, s52, 1
s_andn2_b32 s55, s52, 1
s_or_b32 s55, s55, s53
s_cmp_lt_u32 s42, 128
s_cselect_b32 s52, s55, s52
s_cselect_b32 s53, s54, s53
s_mul_i32 s52, s52, 9216
s_lshl_b32 s53, s53, 6
s_add_u32 s52, s52, s53
s_add_u32 s52, s52, {WS_PART+4096}
v_and_b32 v0, 3, v1
v_lshl_add_u32 v0, v0, 4, s52
v_lshrrev_b32 v210, 2, v1
v_lshl_add_u32 v0, v210, 7, v0
v_add_u32 v251, {WS_SEL+12288}, v251""".split("\n")
        setup = [l.replace("v8", "v200").replace("v9", "v201") for l in setup if l]
        ns0 = self.o.get("setupearly", 0)
        for l in setup[:ns0]: a(l)
        self.setup = setup[ns0:]
        a("s_waitcnt lgkmcnt(0)")
        self.dtcalc(44, 148, 147)
        a(f"v_mul_f32 v149, {LN2SQ}, v148")
        npf = 0
        for t in self.o.get("ms", "s0 c3").split():
            npf += 1
            if t == "c3": self.c3()
            else: self.strip([int(x) for x in t[1:]], 254)
        self.npf = npf
        a(f"s_waitcnt vmcnt({1 + npf})")
        a("; mark K0")
        self.stamp(2)
        DK = self.DK
        self.dsq = []
        self.kgen1()
        d = DK
        a(f"""v_cvt_pk_bf16_f32 v164, v{d+3}, v{d+2}
v_cvt_pk_bf16_f32 v165, v{d+1}, v{d+0}
v_cvt_pk_bf16_f32 v166, v{d+2}, v{d+1}
v_add_f32 v{d+8}, v{d+8}, v207
v_cvt_pk_bf16_f32 v168, v{d+7}, v{d+7}
v_cvt_pk_bf16_f32 v169, v{d+7}, v{d+6}
v_cvt_pk_bf16_f32 v170, v{d+5}, v{d+5}
v_cvt_pk_bf16_f32 v171, v{d+5}, v{d+4}
v_mov_b32 v172, v168
v_cvt_pk_bf16_f32 v173, v{d+6}, v{d+5}
v_mov_b32 v174, v170
v_cvt_pk_bf16_f32 v176, v{d+8}, v{d+9}
v_readlane_b32 s52, v168, 63
v_readlane_b32 s56, v164, 63
v_mov_b32 v167, v168
v_readlane_b32 s57, v176, 32
v_cvt_pk_bf16_f32 v177, v{d+10}, v{d+11}
v_cvt_pk_bf16_f32 v178, v{d+4}, v{d+5}
v_cvt_pk_bf16_f32 v179, v{d+6}, v{d+7}
v_writelane_b32 v167, s56, 63
v_writelane_b32 v167, s57, 32
ds_write_b64 v203, v[164:165] offset:{TA+1080-512}
ds_write_b16 v203, v164 offset:{TB+1082-512}
ds_write_b32 v203, v166 offset:{TB+1084-512}
ds_write_b16_d16_hi v203, v165 offset:{TB+1088-512}
s_mov_b32 exec_hi, 0
ds_write_b128 v203, v[168:171] offset:{TB+560-512}
ds_write_b16 v203, v168 offset:{TA+558-512}
ds_write_b96 v203, v[172:174] offset:{TA+560-512}
ds_write_b16_d16_hi v203, v171 offset:{TA+572-512}
s_mov_b32 exec_lo, 0x80000000
s_mov_b32 exec_hi, 0x80000001
ds_write_b16 v206, v167
ds_write_b16 v206, v167 offset:{TB+2}
s_mov_b64 exec, -1""")
        def kfread(ci):
            c = 32 * ci
            base, off = (248, (512 - c)//2) if c >= 256 else (249, (256 - c)//2)
            return [f"ds_read2_b32 {vr(KF+4*ci,2)}, v{base} offset0:{off} offset1:{off+1}",
                    f"ds_read2_b32 {vr(KF+4*ci+2,2)}, v{base} offset0:{off+2} offset1:{off+3}"]
        def t2read(pi, dl):
            r, off = TF2 + 12*pi + 4*(dl-2), 64*pi + 16*(4-dl)
            return [f"ds_read2_b32 {vr(r,2)}, v250 offset0:{off} offset1:{off+1}", f"ds_read2_b32 {vr(r+2,2)}, v250 offset0:{off+2} offset1:{off+3}"]
        def t3read(dl):
            r, off = TF3 + 4*(dl-4), 128 + 16*(7-dl)
            return [f"ds_read2_b32 {vr(r,2)}, v250 offset0:{off} offset1:{off+1}", f"ds_read2_b32 {vr(r+2,2)}, v250 offset0:{off+2} offset1:{off+3}"]
        for ci in (7, 15, 6, 14, 5, 13, 4, 12, 3, 11, 2, 10, 1, 9, 0, 8):
            for l in kfread(ci): a(l)
        a(f"""s_mov_b32 exec_hi, 0
ds_write_b16 v205, v176 offset:{T2+512+252}
ds_write_b16_d16_hi v205, v176 offset:{T2+512+252-64}
ds_write_b16 v205, v177 offset:{T2+512+252-128}
ds_write_b16_d16_hi v205, v177 offset:{T2+512+252-192}
s_mov_b32 exec_lo, 0
s_mov_b32 exec_hi, -1
ds_write_b32 v204, v178 offset:{T2+4*47}
ds_write_b32 v204, v179 offset:{T2+4*31}
s_mov_b64 exec, -1""")
        bread = [f"ds_read_b128 {vr(BAND+4*i if i < 5 else FIX,4)}, v252 offset:{1024*i}" for i in range(6)]
        late = {0: kfread(16) + t2read(0, 2) + t2read(1, 2),
                1: t2read(0, 3) + t2read(1, 3) + t3read(4) + t2read(0, 4) + t2read(1, 4) + t3read(5), 2: t3read(6) + t3read(7), 3: []}
        late[0] = late[0][:2] + bread + late[0][2:] if late[0] else bread
        a("; mark K2")
        self.dsq = []
        self.stamp(3)
        if self.o.get("mfprio"): a(f"s_setprio {self.o['mfprio']}")
        a("s_barrier")
        self.stamp(4)
        a("; mark C0")
        M = "v_mfma_f32_16x16x32_bf16"
        mf = []
        frags = []
        NUB = 7
        acc = lambda q: (ACC, ACC+4, UB+28)[q % 3]
        def strided(q):
            L = [(Z3 + 4*b, TF3 + 4*(q - b - 4)) for b in range(0, q - 3)]
            for dl in (4, 3, 2):
                b = q - dl
                if b >= 0: L += [(Z2 + 8*(b & 3) + 4*pi, TF2 + 12*pi + 4*(dl-2)) for pi in range(2)]
            return L
        started = set()
        def emit(q, dst, A, B, fi):
            init = q is None or q not in started
            started.add(q)
            mf.append([cnow, dst, A, B, init, fi, [], q])
        def newfrag(z):
            frags.append(z); return len(frags) - 1
        todo = {q: strided(q) for q in range(8)}
        for v in range(-7, 57):
            cnow = (v + 7) // 16
            fi = newfrag(32*v - 16)
            for q in range(8):
                if 0 <= 8*q - v <= 16:
                    emit(q, acc(q), KF + 4*(8*q - v), None, fi)
                    if v == 8*q:
                        assert not todo[q]
                        mf[-1][6].append(("yout", acc(q), q))
            b = v // 8
            if v % 8 == 0 and 0 <= b <= 5:
                emit(None, DT, None, BAND, fi); emit(None, DT+4, None, BAND+4, fi)
                mf[-1][6].append(("z", Z2 + 8*(b & 3), DT, DT+4))
                emit(None, DT+8, None, BAND+8, fi)
                if b <= 3: emit(None, DT+16, None, BAND+12, fi)
                gi = newfrag(256*b - 24)
                emit(None, DT+12, None, BAND+4, gi)
                mf[-1][6].append(("z", Z2 + 8*(b & 3) + 4, DT+8, DT+12))
                if b <= 3:
                    emit(None, DT+20, None, BAND+16, gi)
                    mf[-1][6].append(("z", Z3 + 4*b, DT+16, DT+20))
            elif v % 8:
                q = v // 8 + 1
                left = 8*q - v
                for _ in range(-(-len(todo[q]) // left)): emit(q, acc(q), *todo[q].pop(0), None)
                if left == 4 and q >= 4: emit(q, acc(q), FIX, None, newfrag(32*8*(q-4) - 16))
        nm = len(mf)
        assert nm == 202, nm
        slot = lambda fi: UB + 4*(fi % NUB)
        lastuse = {}
        firstuse = {}
        for i, m in enumerate(mf):
            if m[5] is not None:
                lastuse[m[5]] = i; firstuse.setdefault(m[5], i)
        rid, rtime = {}, {}
        nxt = 0
        nbar = 0
        ywr = {}
        cvq = []
        yq = []
        LAT = self.o.get("ulat", 6)
        xb = [0 if self.o.get("xb0") else 1]
        def can_read(fi, i):
            if fi >= len(frags): return False
            if fi >= NUB and lastuse[fi - NUB] >= i: return False
            return frags[fi] + 271 < 512*(nbar + 1 + xb[0])
        def rd():
            nonlocal nxt
            rid[nxt] = self.ds(f"ds_read_b128 {vr(slot(nxt),4)}, v2 offset:{512 + 2*frags[nxt]}")
            nxt += 1
        def barrier():
            nonlocal nbar
            if nbar == self.o.get("hdrbar", 1): a(f"global_load_dwordx4 v[252:255], v251, s[{S_WS}:{S_WS+1}] sc1")
            if self.o.get("cst"): self.stamp([6, 7, 9][nbar])
            a("s_barrier"); nbar += 1
            if nbar == 2 + self.hl: hdr.extend(self.final_pre())
            if nbar == 3 and not self.hl: assert not any(callable(l) for l in hdr) and self.markid not in self.dsq
            if nbar == 1:
                assert FIX in lid and lid[FIX] not in self.dsq
                for e in range(4): cvq.append([0, f"v_and_b32 v{FIX+e}, s52, v{FIX+e}", {FIX+e}, set()])
        while can_read(nxt, 0): rtime[nxt] = nxt - LAT - 1; rd()
        hdr = []
        lid = {}
        b6 = [0]
        ytime = {}
        dreg = lambda l: {int(x[1:]) for x in Ins(l).w}
        for i, (c, dst, A, B, init, fi, ev, q) in enumerate(mf):
            wr = set(range(dst, dst+4)); rdset = set(range(A, A+4)) if A is not None else set()
            while any((q[3] & wr) or (q[2] & rdset) for q in cvq): a(cvq.pop(0)[1])
            used = rdset | (set(range(B, B+4)) if B is not None else set())
            for cc in range(3):
                for l in late[cc]: assert not (dreg(l) & used), "late read not issued in time"
            for r in used:
                if r in lid: self.dswait(lid.pop(r))
            if init and q is not None and q >= 3: self.dswait(ywr[q - 3])
            if fi is not None and firstuse[fi] == i:
                assert fi in rid
                tgt = fi
                while tgt + 1 in rid and i - rtime[tgt + 1] >= LAT: tgt += 1
                if rid[fi] in self.dsq: self.dswait(rid[tgt])
            Aop = vr(A, 4) if A is not None else vr(slot(fi), 4)
            Bop = vr(B, 4) if B is not None else vr(slot(fi), 4)
            if not (self.o.get("wi_fc") and i % self.o["wi_fc"] == 1): a(f"{M} {vr(dst,4)}, {Aop}, {Bop}, {'0' if init else vr(dst,4)}")
            for x in ev:
                if x[0] == "yout":
                    def f(acc=x[1], q=x[2]): ywr[q] = self.ds(f"ds_write_b128 v3, {vr(acc,4)} offset:{Y_T*q}")
                    yq.append([f"ds_write_b128 v3, {vr(x[1],4)}", f])
                else:
                    for e in range(4): cvq.append([i + 3, f"v_cvt_pk_bf16_f32 v{x[1]+e}, v{x[2]+e}, v{x[3]+e}", {x[1]+e}, {x[2]+e, x[3]+e}])
            free = 2
            if i + 1 < nm:
                nf = mf[i+1][5]
                if nf is not None and firstuse[nf] == i + 1 and nf in rid and rid[nf] in self.dsq: free -= 1
            due = nbar < 3 and (2*nbar + 1) in ywr and i - ytime.setdefault(nbar, i) >= 0
            if due and ywr[2*nbar + 1] in self.dsq and i - ytime[nbar] >= 3:
                self.dswait(ywr[2*nbar + 1]); free -= 1
            if due and ywr[2*nbar + 1] not in self.dsq:
                barrier(); free -= 1
            if nbar == 3 and 6 in ywr and not b6[0]:
                if ywr[6] in self.dsq and i - ytime.setdefault(6, i) >= 3:
                    self.dswait(ywr[6]); free -= 1
                if ywr[6] not in self.dsq:
                    assert not any(callable(l) for l in hdr) and self.markid not in self.dsq
                    a("s_barrier"); b6[0] = 1; free -= 1
            if not xb[0] and i == self.o["xb0"]:
                a("s_barrier"); xb[0] = 1; free -= 1
            nds = 0
            while free > 0 and nds < 1:
                nds += 1
                if yq and a.pad(yq[0][0]) <= 0: yq.pop(0)[1]()
                elif can_read(nxt, i + 1): rtime[nxt] = i; rd()
                elif late[c] and len(self.dsq) < 13 and i % self.o.get('lategap', 2) == 0:
                    l = late[c].pop(0); k = self.ds(l)
                    for r in dreg(l): lid[r] = k
                else:
                    nds -= 1; break
                free -= 1
            while free > 0 and cvq and a.pad(cvq[0][1]) <= 0:
                a(cvq.pop(0)[1]); free -= 1
            while free > 0 and hdr and not cvq and i >= nm - self.o.get("hdrpos", 66):
                l = hdr.pop(0)
                if callable(l): l()
                else: a(l)
                free -= 1
        assert nbar == 3 and not cvq and not hdr
        while yq: yq.pop(0)[1]()
        self.dsall()
        if self.o.get("cst"): self.stamp(10)
        a("s_barrier")
        self.stamp(5)
        a("; mark C1")
        self.final()

    def final_pre(self):
        a = self.a
        st = {}
        def rdtag(): st["t"] = self.ds("ds_read_b32 v232, v232")
        def chk():
            self.dswait(st["t"])
            a("s_waitcnt vmcnt(0)\nv_cmp_ne_u32 vcc, v232, v255\ns_cbranch_vccnz L_pollH")
            a.label("L_pollH_done")
        def mark(): self.markid = self.ds("ds_write_b8 v233, v232")
        L = [f"v_mov_b32 v232, {L_TAG}", "v_bfe_u32 v234, v1, 1, 2" if self.fm else "v_lshrrev_b32 v234, 4, v1", rdtag, "s_lshl_b32 s44, s42, 3", "v_lshl_add_u32 v235, v234, 1, s44",
             f"v_mul_u32_u24 v236, {U_ROW}, v234", f"v_mul_u32_u24 v237, {Y_CH}, v234", "s_movk_i32 s44, 1152", chk]
        L += f"""v_readfirstlane_b32 s{S_TAG}, v232
v_and_b32 v252, 2047, v252
v_add_u32 v233, {L_MK}, v252
v_mov_b32 v232, 1
v_mad_u32_u24 v235, v252, s44, v235""".split("\n")
        L += [mark]
        L += f"""v_lshl_add_u32 v236, v252, 1, v236
v_add_u32 v236, {L_U+512}, v236
v_lshrrev_b32 v239, 8, v252
v_mul_u32_u24 v239, {Y_T}, v239
v_add_u32 v237, v237, v239
v_bfe_u32 v239, v252, 2, 2
v_mul_u32_u24 v239, 320, v239
v_add_u32 v237, v237, v239
v_bfe_u32 v239, v252, 4, 4
v_lshl_add_u32 v237, v239, 4, v237
v_and_b32 v239, 3, v252
v_lshl_add_u32 v237, v239, 2, v237
v_mul_f32 v254, {NLOG2E + (96 << 23)}, v254
v_add_u32 v239, 4096, v0
s_mov_b32 s45, 0""".split("\n")
        L += self.ptags(56, 60)
        return L
    def final(self):
        a = self.a
        P = 20
        A = 44
        def preset():
            for c in range(4): a(f"v_mov_b32 v{P+16+c}, s{56+c}")
        def loads():
            for j in range(4): a(f"global_load_dwordx4 {vr(P+4*j,4)}, v0, s[{S_WS}:{S_WS+1}] offset:{2048*j - 4096} sc1")
            a(f"s_mov_b32 exec_hi, 0\nglobal_load_dwordx4 {vr(P+16,4)}, v239, s[{S_WS}:{S_WS+1}] sc1\ns_mov_b32 exec_hi, -1")
        def check(ex):
            if self.fm:
                for j in range(5):
                    p = P + 4*j
                    a(f"s_waitcnt vmcnt({4-j})")
                    for c in range(4): a(f"v_xor_b32 v{p+c}, s{56+c}, v{p+c}")
                    a(f"v_or3_b32 v17, {'v17' if j else '0'}, v{p}, v{p+1}\nv_or3_b32 v17, v17, v{p+2}, v{p+3}")
                    a(f"v_mfma_f32_16x16x32_bf16 {vr(A,4)}, {vr(p,4)}, v[8:11], {vr(A,4) if j else '0'}")
                a("v_and_b32 v17, 0x60006000, v17\nv_cmp_ne_u32 vcc, 0, v17")
                return
            for j in range(5):
                p = P + 4*j
                a(f"s_waitcnt vmcnt({4-j+ex})")
                if j == 4: a("s_mov_b32 exec_hi, 0")
                for c in range(4): a(f"v_xor_b32 v{p+c}, s{56+c}, v{p+c}")
                a(f"v_or3_b32 v17, {'v17' if j else '0'}, v{p}, v{p+1}\nv_or3_b32 v17, v17, v{p+2}, v{p+3}")
                for c in range(4):
                    for tk in range(2): a(f"v_dot2_f32_bf16 v{A+2*c+tk}, v{p+c}, v{15+tk}, {('v' + str(A+2*c+tk)) if j else '0'}")
            a("s_mov_b32 exec_hi, -1\nv_and_b32 v17, 0x60006000, v17\nv_cmp_ne_u32 vcc, 0, v17")
        a(f"s_cmp_lg_u32 s{S_WAVE}, 0\ns_cbranch_scc1 L_fin_done")
        if self.fm:
            a(f"""global_load_ushort v238, v235, s[{S_X}:{S_X+1}]
ds_read_u16 v14, v236
ds_read_b32 v13, v237
v_and_b32 v4, 1, v1
v_lshlrev_b32 v4, 4, v4
v_mov_b32 v5, 0x3f80
v_lshlrev_b32 v4, v4, v5
v_bfe_u32 v5, v1, 1, 3""")
            for d in range(4): a(f"v_cmp_eq_u32 vcc, {d}, v5\nv_cndmask_b32 v{8+d}, 0, v4, vcc")
            preset()
            a("s_mov_b32 s44, 0x00ff00ff")
        if self.gd is not None:
            fs = self.o.get("fstr", 128)
            a(f"""v_mul_u32_u24 v2, {fs}, v1
v_add_u32 v2, {WS_FLAG}, v2
v_and_b32 v4, 7, v1
v_mul_u32_u24 v4, {fs}, v4
v_add_u32 v4, {WS_FLAG + 64*fs}, v4""")
            a.label("L_go")
            a(f"""global_load_dword v3, v2, s[{S_WS}:{S_WS+1}] sc1
global_load_dword v5, v4, s[{S_WS}:{S_WS+1}] sc1
s_add_u32 s45, s45, 1
s_cmp_ge_u32 s45, {SPIN}
s_cbranch_scc1 L_go_done
s_waitcnt vmcnt(0)
v_cmp_ne_u32 s[46:47], s{S_TAG}, v3
v_cmp_ne_u32 vcc, s{S_TAG}, v5
s_or_b64 exec, vcc, s[46:47]
s_cbranch_scc1 L_go""")
        else:
            a(f"v_mov_b32 v2, {WS_GO}\ns_mov_b64 exec, 1")
            if self.o.get("wi_nb"): a("s_branch L_go_done")
            a.label("L_go")
            a(f"""global_load_dword v3, v2, s[{S_WS}:{S_WS+1}] sc1
s_add_u32 s45, s45, 1
s_cmp_ge_u32 s45, {SPIN}
s_cbranch_scc1 L_go_done
s_waitcnt vmcnt(0)
v_cmp_ne_u32 vcc, s{S_TAG}, v3
s_cbranch_vccnz L_go""")
        a.label("L_go_done")
        a("s_mov_b64 exec, -1\ns_mov_b32 s45, 0\ns_waitcnt vmcnt(0)")
        self.stamp(6)
        loads()
        if self.fm: a("s_waitcnt lgkmcnt(0)\nv_lshlrev_b32 v14, 16, v14\nv_lshlrev_b32 v238, 16, v238")
        else:
            a(f"global_load_ushort v238, v235, s[{S_X}:{S_X+1}]\nds_read_u16 v14, v236\nds_read_b32 v13, v237")
            a("v_mov_b32 v15, 0x3f80\nv_mov_b32 v16, 1.0\ns_mov_b32 s48, 0xf0f0f0f0\ns_mov_b32 s49, 0xf0f0f0f0")
        check(1)
        if not self.o.get("wi_nb"): a("s_cbranch_vccnz L_pollB")
        a.label("L_pollB_done")
        self.stamp(7)
        if self.fm: a(f"""v_permlane32_swap_b32 v{A}, v{A+2}
v_permlane32_swap_b32 v{A+1}, v{A+3}
v_pk_add_f32 {vr(A,2)}, {vr(A,2)}, {vr(A+2,2)}
v_permlane16_swap_b32 v{A}, v{A+1}
v_add_f32 v{A}, v{A}, v{A+1}""")
        else: a(f"""v_permlane32_swap_b32 v{A}, v{A+4}
v_permlane32_swap_b32 v{A+1}, v{A+5}
v_permlane32_swap_b32 v{A+2}, v{A+6}
v_permlane32_swap_b32 v{A+3}, v{A+7}
v_pk_add_f32 {vr(A,2)}, {vr(A,2)}, {vr(A+4,2)}
v_pk_add_f32 {vr(A+2,2)}, {vr(A+2,2)}, {vr(A+6,2)}
s_waitcnt vmcnt(0) lgkmcnt(0)
v_lshlrev_b32 v14, 16, v14
v_permlane16_swap_b32 v{A}, v{A+2}
v_permlane16_swap_b32 v{A+1}, v{A+3}
v_pk_add_f32 {vr(A,2)}, {vr(A,2)}, {vr(A+2,2)}
v_lshlrev_b32 v238, 16, v238
s_mov_b32 s44, 0x00ff00ff
v_add_f32_dpp v{A}, v{A}, v{A} row_ror:4 row_mask:0xf bank_mask:0xf
v_add_f32_dpp v{A+1}, v{A+1}, v{A+1} row_ror:4 row_mask:0xf bank_mask:0xf
v_cndmask_b32 v{A}, v{A}, v{A+1}, s[48:49]
v_add_f32_dpp v{A}, v{A}, v{A} row_ror:8 row_mask:0xf bank_mask:0xf""")
        a(f"""v_fma_f32 v18, v{A}, v254, v14
v_exp_f32 v19, v18
v_mul_f32 v18, v18, v13
v_add_f32 v19, 1.0, v19
v_rcp_f32 v19, v19
s_mov_b32 exec_lo, s44
s_mov_b32 exec_hi, s44
v_fma_f32 v18, v18, v19, v238
v_cvt_pk_bf16_f32 v18, v18, v18
{'s_barrier' if self.hl else ''}
global_store_short v235, v18, s[{S_OUT}:{S_OUT+1}]
s_cmp_lg_u32 s2, 8
s_cbranch_scc1 L_fin_done
s_mov_b64 exec, 1
v_mov_b32 v2, 0
v_mov_b32 v3, s{S_TAG}
global_store_dword v2, v3, s[{S_WS}:{S_WS+1}]""")
        a.label("L_fin_done")
        self.finish("fin")
        a.label("L_pollB")
        if self.fm and self.o.get("bmask"):
            a("s_mov_b64 s[46:47], vcc\ns_mov_b64 exec, vcc")
            preset()
            for j in range(4): a(f"global_load_dwordx4 {vr(P+4*j,4)}, v0, s[{S_WS}:{S_WS+1}] offset:{2048*j - 4096} sc1")
            a(f"s_or_b32 exec_lo, s46, 1\ns_mov_b32 exec_hi, 0\nglobal_load_dwordx4 {vr(P+20,4)}, v239, s[{S_WS}:{S_WS+1}] sc1\ns_add_u32 s45, s45, 1\ns_waitcnt vmcnt(0)\ns_mov_b32 exec_lo, s46")
            for c in range(4): a(f"v_mov_b32 v{P+16+c}, v{P+20+c}")
            a("s_mov_b64 exec, s[46:47]")
            for r in range(20): a(f"v_xor_b32 v{P+r}, s{56 + (r & 3)}, v{P+r}")
            a("s_mov_b64 exec, -1")
            for j in range(5):
                p = P + 4*j
                a(f"v_or3_b32 v17, {'v17' if j else '0'}, v{p}, v{p+1}\nv_or3_b32 v17, v17, v{p+2}, v{p+3}")
                a(f"v_mfma_f32_16x16x32_bf16 {vr(A,4)}, {vr(p,4)}, v[8:11], {vr(A,4) if j else '0'}")
            a("v_and_b32 v17, 0x60006000, v17\nv_cmp_ne_u32 vcc, 0, v17")
        else:
            if self.fm: preset()
            loads()
            a("s_add_u32 s45, s45, 1")
            check(0)
        a(f"""s_mov_b64 exec, -1
s_cbranch_vccz L_pollB_done
s_cmp_lt_u32 s45, {SPIN}
s_cbranch_scc1 L_pollB
s_branch L_pollB_done""")
        a.label("L_pollH")
        a("s_mov_b32 s45, 0")
        a.label("L_pollH2")
        a(f"""global_load_dwordx4 v[252:255], v251, s[{S_WS}:{S_WS+1}] sc1
s_add_u32 s45, s45, 1
s_waitcnt vmcnt(0)
v_cmp_ne_u32 vcc, v232, v255
s_cbranch_vccz L_pollH_done
s_cmp_lt_u32 s45, {SPIN}
s_cbranch_scc1 L_pollH2""")
        a("s_branch L_pollH_done")

    def selector(self):
        a = self.a
        L_MS, L_LIST, L_WM, L_CNT, L_SEL = 0, 8192, 16384, 16640, 16672
        a.label("L_sel_lo")
        a(f"""v_mov_b32 v2, 0
v_lshlrev_b32 v3, 2, v1
ds_write_b32 v3, v2 offset:{L_LIST}
ds_write_b32 v2, v2 offset:{L_CNT}
ds_write_b32 v2, v2 offset:{L_CNT+4}""")
        if self.ls:
            a(f"""s_lshl_b32 s43, s{S_XCD}, 14
s_add_u32 s43, s43, {WS_SELX}
v_lshl_add_u32 v11, v0, 4, s43
v_add_u32 v12, 8192, v11
s_cmp_ge_u32 s{S_WAVE}, 3
s_cbranch_scc1 L_sel_pw
s_lshl_b32 s44, s{S_WAVE}, 12
s_add_u32 s44, s44, s43
v_lshl_add_u32 v63, v1, 7, s44
s_mov_b32 exec_hi, 0
global_load_dword v62, v63, s[{S_WS}:{S_WS+1}] sc1
s_mov_b64 exec, -1
L_sel_pw:""")
        self.lnbars("sel")
        if self.ls: a(f"v_mov_b32 v2, {L_TAGR}\nds_read_b32 v2, v2\ns_waitcnt lgkmcnt(0)\nv_readfirstlane_b32 s{S_TAG}, v2")
        for rnd in range(self.o.get("selpf", 0)):
            a(f"""s_mul_i32 s42, s{S_WAVE}, 73728
s_add_u32 s42, s42, {62*73728 + (8 - rnd)*8192}
v_lshl_add_u32 v2, v1, 7, s42
{'s_waitcnt vmcnt(0)' if self.o.get('sela') else ''}
s_mov_b64 exec, {(1 << self.o.get('sell', 32)) - 1 if self.o.get('sell', 32) < 32 else '-1'}
s_mov_b32 exec_hi, 0
global_load_dword v2, v2, s[{S_WD}:{S_WD+1}]
s_mov_b64 exec, -1
s_waitcnt vmcnt(0)""")
        a(f"""v_lshlrev_b32 v2, 4, v0
v_add_u32 v3, {WS_STATS+8192}, v2
v_add_u32 v2, {WS_STATS}, v2
v_lshlrev_b32 v4, 1, v0
v_sub_u32 v4, 2047, v4
v_add_u32 v5, -1, v4
v_add_u32 v6, 0xfffffc00, v4
v_add_u32 v7, 0xfffffc00, v5
v_lshlrev_b32 v8, 3, v0
s_mul_i32 s44, s{S_WAVE}, 43
s_lshr_b32 s44, s44, 7
s_mul_i32 s44, s44, {288 - 36}
s_mul_i32 s45, s{S_WAVE}, 12
s_add_u32 s44, s44, s45
v_lshrrev_b32 v9, 4, v1
v_mul_u32_u24 v9, 72, v9
v_bfe_u32 v10, v1, 1, 1
v_mul_u32_u24 v10, 36, v10
v_add_u32 v10, v9, v10
v_add_u32 v9, s44, v10
s_cmp_eq_u32 s{S_WAVE}, 0
s_cselect_b32 s44, 0, 252
s_add_u32 s44, s44, s45
s_add_u32 s44, s44, 600
v_add_u32 v10, s44, v10
s_mov_b32 s43, {WS_SEL}
{'' if self.ls else 'v_lshl_add_u32 v11, v0, 4, s43'}
{'' if self.ls else 'v_add_u32 v12, 8192, v11'}
v_lshrrev_b32 v13, 3, v0
v_lshlrev_b32 v13, 2, v13
v_and_b32 v61, 7, v1
v_lshlrev_b32 v61, 5, v61
s_mov_b32 s56, 0xff00ff00
s_mov_b32 s57, 0xff00ff00
s_mov_b32 s59, 0
s_mov_b32 s65, {self.o.get('want', 8)}
s_movk_i32 s58, 1152
s_mov_b32 s60, 0x01010101
s_mov_b32 s61, 0x01010101
v_mov_b32 v14, 0
v_mov_b32 v15, 4
v_and_b32 v16, 15, v1
v_lshlrev_b32 v16, 2, v16
v_and_b32 v17, 0x30, v1
v_and_b32 v18, 12, v1
v_and_b32 v19, 1, v1
v_lshl_add_u32 v18, v19, 4, v18
s_mov_b32 s42, 0
s_mov_b32 s54, 0xffff
s_mov_b32 s55, {HI}
v_mov_b32 v39, s{S_TAG}
v_mov_b32 v43, s{S_TAG}
v_mov_b32 v47, s{S_TAG}
s_waitcnt vmcnt({self.o.get('selw', 0)}) lgkmcnt(0)
s_barrier""")
        self.stamp(4)
        a.label("L_pollS")
        a(f"""global_load_dwordx4 v[20:23], v2, s[{S_WS}:{S_WS+1}] sc1
global_load_dwordx4 v[24:27], v3, s[{S_WS}:{S_WS+1}] sc1
s_add_u32 s42, s42, 1
s_cmp_ge_u32 s42, {SPIN}
s_cbranch_scc1 L_pollS_done
s_waitcnt vmcnt(0)
v_cmp_ne_u32 s[46:47], s{S_TAG}, v23
v_cmp_ne_u32 vcc, s{S_TAG}, v27
s_or_b64 exec, vcc, s[46:47]
s_cbranch_scc1 L_pollS""")
        a.label("L_pollS_done")
        a("s_mov_b64 exec, -1\ns_waitcnt vmcnt(0)")
        self.stamp(5)
        def rank16(own, oth, r):
            a(f"""v_sub_u32 v{oth}, v{own}, v{oth}
v_sub_u32 v{oth+1}, v{own}, v{oth+1}
v_sub_u32 v{oth+2}, v{own}, v{oth+2}
v_sub_u32 v{oth+3}, v{own}, v{oth+3}
v_lshrrev_b32 v{oth}, 31, v{oth}
v_lshrrev_b32 v{oth+1}, 31, v{oth+1}
v_lshrrev_b32 v{oth+2}, 31, v{oth+2}
v_lshrrev_b32 v{oth+3}, 31, v{oth+3}
v_add3_u32 v{oth}, v{oth}, v{oth+1}, v{oth+2}
v_add_u32 v{r}, v{oth}, v{oth+3}
v_add_u32 v{oth}, v{oth}, v{oth+3}
v_permlane16_swap_b32 v{r}, v{oth}
v_add_u32 v{oth+1}, v{r}, v{oth}
v_add_u32 v{r}, v{r}, v{oth}
v_permlane32_swap_b32 v{r}, v{oth+1}
v_add_u32 v{r}, v{r}, v{oth+1}""")
        a(f"""v_and_b32 v28, s54, v22
v_lshrrev_b32 v29, 16, v22
v_and_b32 v30, s54, v26
v_lshrrev_b32 v31, 16, v26
v_lshl_or_b32 v28, v28, 11, v4
v_lshl_or_b32 v29, v29, 11, v5
v_lshl_or_b32 v30, v30, 11, v6
v_lshl_or_b32 v31, v31, 11, v7
v_max3_u32 v32, v28, v29, v30
v_med3_u32 v33, v28, v29, v30
v_med3_u32 v33, v32, v33, v31
v_max_u32 v32, v32, v31""")
        for sh in (8, 4, 2, 1):
            d = f"row_ror:{sh} row_mask:0xf bank_mask:0xf"
            a(f"v_min_u32_dpp v34, v32, v32 {d}\nv_max_u32_dpp v32, v32, v32 {d}\nv_max_u32_dpp v33, v33, v33 {d}\nv_max_u32 v33, v33, v34")
        a(f"""v_cndmask_b32 v34, v32, v33, s[56:57]
ds_write_b32 v13, v34 offset:{L_WM}
s_waitcnt lgkmcnt(0)
s_barrier
ds_read_b128 v[48:51], v61 offset:{L_WM}
ds_read_b128 v[52:55], v61 offset:{L_WM+16}
s_waitcnt lgkmcnt(1)""")
        for j in range(8):
            if j == 4: a("s_waitcnt lgkmcnt(0)")
            a(f"v_sub_u32 v{48+j}, v34, v{48+j}\nv_alignbit_b32 v35, {'v35' if j else '0'}, v{48+j}, 31")
        a(f"""v_bcnt_u32_b32 v35, v35, 0
v_add_u32_dpp v35, v35, v35 quad_perm:[1,0,3,2] row_mask:0xf bank_mask:0xf
v_add_u32_dpp v35, v35, v35 quad_perm:[2,3,0,1] row_mask:0xf bank_mask:0xf
v_add_u32_dpp v35, v35, v35 row_half_mirror row_mask:0xf bank_mask:0xf
v_min_u32 v35, 8, v35
v_lshlrev_b32 v35, 2, v35
ds_write_b32 v35, v34 offset:{L_SEL}
s_waitcnt lgkmcnt(0)
s_barrier""")
        a.label("L_sel_got")
        a(f"""ds_read_b32 v34, v18 offset:{L_SEL}
ds_read_b32 v33, v14 offset:{L_SEL+28}
s_waitcnt lgkmcnt(1)
v_and_b32 v36, 2047, v34
v_sub_u32 v36, 2047, v36
v_mad_u32_u24 v62, v36, s58, v9
global_load_dwordx3 v[40:42], v62, s[{S_X}:{S_X+1}]
s_cmp_ge_u32 s{S_WAVE}, 4
s_cbranch_scc1 L_sel_one
v_mad_u32_u24 v62, v36, s58, v10
global_load_dwordx3 v[44:46], v62, s[{S_X}:{S_X+1}]""")
        a.label("L_sel_one")
        self.stamp(6)
        a(f"""ds_write_b64 v8, v[20:21] offset:{L_MS}
ds_write_b64 v8, v[24:25] offset:{L_MS+4096}
s_waitcnt lgkmcnt(2)""")
        for j in range(4): a(f"v_cmp_le_u32 s[{46+2*j}:{47+2*j}], v33, v{28+j}")
        a(f"""v_lshlrev_b32 v19, 2, v36
s_bcnt1_i32_b64 s44, s[46:47]
s_bcnt1_i32_b64 s45, s[48:49]
s_bcnt1_i32_b64 s62, s[50:51]
s_bcnt1_i32_b64 s63, s[52:53]
s_add_u32 s44, s44, s45
s_add_u32 s62, s62, s63
s_add_u32 s44, s44, s62
v_mov_b32 v35, s44
s_mov_b64 exec, 1
ds_add_u32 v14, v35 offset:{L_CNT+4}
s_mov_b64 exec, -1
s_waitcnt lgkmcnt(0)
s_barrier
ds_read_b32 v35, v14 offset:{L_CNT+4}
ds_read_b32 v37, v19 offset:{L_MS}
s_waitcnt lgkmcnt(0)
v_max_u32 v35, s59, v35
v_cmp_ne_u32 vcc, s65, v35
s_cbranch_vccnz L_sel_fb
v_and_b32 v50, s55, v37
v_rcp_f32 v50, v50
v_lshlrev_b32 v48, 16, v37
v_mul_f32 v48, v48, v50
s_cmp_ge_u32 s{S_WAVE}, 4
s_cbranch_scc1 L_sel_w
s_waitcnt vmcnt(1)""")
        def norm(g):
            t = 52
            for i in range(3): a(f"v_lshlrev_b32 v{t+2*i}, 16, v{g+i}\nv_and_b32 v{t+2*i+1}, s55, v{g+i}")
            for i in range(3): a(f"v_pk_fma_f32 {vr(t+2*i,2)}, {vr(t+2*i,2)}, v[50:51], v[48:49] op_sel_hi:[1,0,0] neg_lo:[0,0,1] neg_hi:[0,0,1]")
            for i in range(3): a(f"v_cvt_pk_bf16_f32 v{g+i}, v{t+2*i}, v{t+2*i+1}")
        self.stamp(7)
        norm(40)
        mf = "" if self.ls else "sc1"
        a(f"global_store_dwordx4 v11, v[40:43], s[{S_WS}:{S_WS+1}] {mf}\ns_waitcnt vmcnt(1)")
        norm(44)
        a(f"global_store_dwordx4 v12, v[44:47], s[{S_WS}:{S_WS+1}] {mf}\ns_branch L_sel_done")
        a.label("L_sel_w")
        a("s_waitcnt vmcnt(0)")
        self.stamp(7)
        norm(40)
        a(f"""global_store_dwordx4 v11, v[40:43], s[{S_WS}:{S_WS+1}] {mf}
s_lshl3_add_u32 s44, s2, s{S_WAVE}
s_cmp_lg_u32 s44, {255*8 + 7}
s_cbranch_scc1 L_sel_done
v_lshlrev_b32 v38, 5, v34
v_and_b32 v38, s55, v38
v_ashrrev_i32 v35, 31, v38
v_not_b32 v35, v35
v_or_b32 v35, 0x80000000, v35
v_xor_b32 v38, v38, v35
v_and_b32 v38, s55, v38
v_mul_f32 v38, {NLOG2E}, v38
v_exp_f32 v38, v38
v_add_f32 v38, 1.0, v38
v_rcp_f32 v38, v38
v_cvt_pk_bf16_f32 v38, v38, v38
v_and_b32 v38, s55, v38
s_add_u32 s43, s43, 12288
v_lshl_add_u32 v35, v18, 2, s43
s_mov_b64 exec, 0x3333
global_store_dwordx4 v35, v[36:39], s[{S_WS}:{S_WS+1}] sc1
s_mov_b64 exec, -1""")
        a.label("L_sel_done")
        self.stamp(8)
        if self.stamps == 1: a("s_waitcnt vmcnt(0)"); self.stamp(9)
        def gcopy():
            a(f"""s_mov_b32 s43, {WS_SEL}
v_lshl_add_u32 v11, v0, 4, s43
v_add_u32 v12, 8192, v11
global_store_dwordx4 v11, v[40:43], s[{S_WS}:{S_WS+1}] sc1
s_cmp_ge_u32 s{S_WAVE}, 4
s_cbranch_scc1 L_gc
global_store_dwordx4 v12, v[44:47], s[{S_WS}:{S_WS+1}] sc1
L_gc:""")
        if self.ls:
            a("s_cmp_lg_u32 s2, 255\ns_cbranch_scc1 L_sel_end")
            if self.ls == 1: gcopy()
        if self.gd is not None:
            assert self.ls < 2
            a.label("L_sel_end")
            self.finish("sel")
        else: self.relay(gcopy)
        self.sel_fb(rank16)
    def relay(self, gcopy):
        a = self.a
        a(f"""s_cmp_lg_u32 s{S_WAVE}, 4
s_cbranch_scc1 {'L_gw' if self.ls == 2 else 'L_agg_done'}
v_mul_u32_u24 v2, {self.o.get('fstr', 128)}, v1
v_add_u32 v2, {WS_FLAG}, v2
v_and_b32 v3, 7, v1
v_mul_u32_u24 v3, {self.o.get('fstr', 128)}, v3
v_add_u32 v3, {WS_FLAG + 64*self.o.get('fstr', 128)}, v3
v_mov_b32 v6, {WS_GO}
s_mov_b32 s42, 0""")
        a.label("L_agg")
        a(f"""global_load_dword v4, v2, s[{S_WS}:{S_WS+1}] sc1
global_load_dword v5, v3, s[{S_WS}:{S_WS+1}] sc1
s_add_u32 s42, s42, 1
s_cmp_ge_u32 s42, {SPIN if self.ls < 2 else 2*LSPIN}
s_cbranch_scc1 L_agg_go
s_waitcnt vmcnt(0)
v_cmp_ne_u32 s[46:47], s{S_TAG}, v4
v_cmp_ne_u32 vcc, s{S_TAG}, v5
s_or_b64 exec, vcc, s[46:47]
s_cbranch_scc1 L_agg""")
        a.label("L_agg_go")
        a(f"""s_mov_b64 exec, 1
global_store_dword v6, v39, s[{S_WS}:{S_WS+1}] sc1""")
        self.stamp(10)
        if self.ls == 2:
            a("s_branch L_gx")
            a.label("L_gw")
            a(f"v_mov_b32 v6, {WS_GO}\ns_mov_b32 s42, 0\ns_mov_b64 exec, 1")
            a.label("L_gw2")
            a(f"""global_load_dword v4, v6, s[{S_WS}:{S_WS+1}] sc1
s_add_u32 s42, s42, 1
s_cmp_ge_u32 s42, {2*LSPIN}
s_cbranch_scc1 L_gx
s_waitcnt vmcnt(0)
v_cmp_ne_u32 vcc, s{S_TAG}, v4
s_cbranch_vccnz L_gw2""")
            a.label("L_gx")
            a("s_mov_b64 exec, -1\ns_waitcnt vmcnt(0)")
            gcopy()
        a.label("L_agg_done")
        a.label("L_sel_end")
        self.finish("sel")
    def sel_fb(self, rank16):
        a = self.a
        L_MS, L_LIST, L_WM, L_CNT, L_SEL = 0, 8192, 16384, 16640, 16672
        a.label("L_sel_fb")
        a("s_mov_b32 s59, -1\ns_mov_b32 s65, -1\ns_waitcnt vmcnt(0)")
        for j in range(4): a(f"s_mov_b64 exec, s[{46+2*j}:{47+2*j}]\nds_add_rtn_u32 v{52+j}, v14, v15 offset:{L_CNT}")
        a("s_waitcnt lgkmcnt(0)")
        for j in (3, 2, 1, 0): a((f"s_mov_b64 exec, s[{46+2*j}:{47+2*j}]\n" if j < 3 else "") + f"ds_write_b32 v{52+j}, v{28+j} offset:{L_LIST}")
        a(f"""s_mov_b64 exec, -1
s_waitcnt lgkmcnt(0)
s_barrier
ds_read_b32 v34, v16 offset:{L_LIST}
ds_read_b128 v[48:51], v17 offset:{L_LIST}
ds_read_b32 v33, v14 offset:{L_CNT}
s_waitcnt lgkmcnt(1)""")
        rank16(34, 48, 35)
        a(f"""v_cmp_gt_u32 vcc, 8, v35
v_lshlrev_b32 v35, 2, v35
s_waitcnt lgkmcnt(0)
v_readfirstlane_b32 s45, v33
s_mov_b64 exec, vcc
ds_write_b32 v35, v34 offset:{L_SEL}
s_mov_b64 exec, -1
s_cmp_gt_u32 s45, {self.o.get('fastcap', 64)}
s_cbranch_scc1 L_sel_slow""")
        a("s_branch L_sel_got")
        a.label("L_sel_slow")
        a(f"""s_waitcnt lgkmcnt(0)
s_barrier
v_lshlrev_b32 v16, 2, v0
s_mov_b32 s47, 0""")
        a.label("L_slow_outer")
        a(f"""ds_read_b32 v34, v16 offset:{L_LIST}
v_mov_b32 v35, 0
v_mov_b32 v17, 0
s_mov_b32 s46, 0""")
        a.label("L_slow_inner")
        a(f"""ds_read_b32 v36, v17 offset:{L_LIST}
v_add_u32 v17, 4, v17
s_add_u32 s46, s46, 4
s_waitcnt lgkmcnt(0)
v_cmp_gt_u32 vcc, v36, v34
v_addc_co_u32 v35, vcc, 0, v35, vcc
s_cmp_lt_u32 s46, s45
s_cbranch_scc1 L_slow_inner
v_cmp_gt_u32 vcc, 8, v35
v_cmp_gt_u32 s[48:49], s45, v16
v_lshlrev_b32 v35, 2, v35
s_and_b64 exec, vcc, s[48:49]
ds_write_b32 v35, v34 offset:{L_SEL}
s_mov_b64 exec, -1
v_add_u32 v16, 2048, v16
s_add_u32 s47, s47, 2048
s_cmp_lt_u32 s47, s45
s_cbranch_scc1 L_slow_outer
s_waitcnt lgkmcnt(0)
s_barrier
s_branch L_sel_got""")

    def ffn(self):
        a = self.a
        o = self.o
        nt = " nt" if o.get("nt", 1) else ""
        dnt = " nt" if o.get("dnt", 1) else ""
        L_P, L_H = 0, 16384
        SM = "v_smfmac_f32_16x16x64_bf16"
        a.label("L_roles2")
        self.frange()
        a(f"""s_cmp_ge_u32 s{S_R}, s61
s_cbranch_scc1 L_pref
s_add_u32 s42, s60, s{S_R}
s_cmp_ge_u32 s{S_WAVE}, 4
s_cbranch_scc1 L_dn
s_lshl_b32 s43, s42, 7
s_mul_i32 s44, s{S_WAVE}, {144*9216}
s_add_u32 s43, s43, s44
v_lshrrev_b32 v2, 5, v1
v_mul_u32_u24 v2, {36*9216}, v2
v_bfe_u32 v3, v1, 4, 1
v_mul_u32_u24 v6, {34*9216}, v3
v_add_u32 v6, v6, v2
v_mul_u32_u24 v3, {2*9216}, v3
v_add3_u32 v2, v2, v3, s43
v_and_b32 v3, 7, v1
v_lshl_add_u32 v2, v3, 4, v2
v_mov_b32 v3, 0
v_bfe_i32 v4, v1, 3, 1
v_add_u32 v6, {16*9216}, v6
v_mov_b32 v7, 0
s_mov_b32 s48, 9216
s_mov_b32 s49, 0
s_mov_b32 s50, {17*9216}
s_mov_b32 s51, 0
s_mov_b32 s52, {53*9216}
s_mov_b32 s53, 0
s_mov_b32 s54, {(-87*9216) & 0xffffffff}
s_mov_b32 s55, -1
s_sub_u32 s46, s{S_WU}, s{S_WG}
s_subb_u32 s47, s{S_WU+1}, s{S_WG+1}
v_lshl_add_u64 v[2:3], v[2:3], 0, s[{S_WG}:{S_WG+1}]
v_and_b32 v5, s47, v4
v_and_b32 v4, s46, v4
v_lshl_add_u64 v[2:3], v[2:3], 0, v[4:5]
v_lshl_add_u64 v[4:5], v[2:3], 0, v[6:7]""")
        if o.get("psync"): a(f"v_mov_b32 v8, {L_TAGR + 4}\nds_write_b32 v8, v7\ns_waitcnt lgkmcnt(0)")
        OUT = [8, 72]; RAW = [72, 136]; RAWR, OUTR, ACC, SUM, MSG, AR = 200, 136, 152, 184, 216, 228
        order = []
        for st in range(2):
            for b1 in range(2):
                for b2 in range(2):
                    for b0 in range(2):
                        for hf in range(2): order.append((st, 4*b2 + 2*b1 + b0, hf))
        inc = [48, 50, 48, 52, 48, 50, 48, 54]
        def gsetup():
            a(f"""v_lshrrev_b32 v252, 4, v1
v_and_b32 v248, 15, v1
v_lshlrev_b32 v248, 3, v248
v_lshl_add_u32 v248, v252, 8, v248
s_lshl_b32 s44, s{S_WAVE}, 10
v_add_u32 v248, s44, v248
v_add_u32 v249, 128, v248
s_and_b32 s44, s{S_WAVE}, 1
s_lshl_b32 s44, s44, 8
s_and_b32 s45, s{S_WAVE}, 2
s_add_u32 s44, s44, s45
v_lshl_add_u32 v250, v252, 6, s44
v_bfe_u32 v252, v1, 3, 1
v_lshl_add_u32 v250, v252, 9, v250
v_and_b32 v252, 4, v1
v_add_u32 v250, v250, v252
v_and_b32 v252, 1, v1
v_lshl_add_u32 v250, v252, 3, v250
v_bfe_u32 v252, v1, 1, 1
v_lshl_add_u32 v250, v252, 5, v250
s_mov_b32 s58, 0x6f800000
v_mul_u32_u24 v251, 0xaaaa, v252
v_add_u32 v251, 0x4444, v251
s_mov_b32 s46, 0x05040100
s_mov_b32 s47, 0x07060302
s_mul_i32 s44, s{S_WAVE}, 3072
s_lshl_b32 s45, s{S_XCD}, 14
s_add_u32 s45, s45, {WS_SELX - WS_SEL}
s_mov_b32 s59, {'s45' if self.ls else '0'}
s_add_u32 s44, s44, {WS_SEL}
s_add_u32 s44, s44, s59
v_lshl_add_u32 v6, v1, 4, s44
s_lshl_b32 s44, s{S_WAVE}, 12
v_lshl_add_u32 v7, v1, 4, s44
v_bfe_i32 v253, v1, 1, 1
v_not_b32 v252, v253
s_mul_i32 s44, s42, {o.get('fstr', 128)}
s_lshl_b32 s45, s{S_WAVE}, 15
s_add_u32 s44, s44, s45
s_add_u32 s44, s44, {WS_FLAG}
s_cmp_eq_u32 s42, {o.get("fmsg", 11)}
s_cselect_b32 s45, 0, 0x20000
s_add_u32 s44, s44, s45
v_mov_b32 v230, s44
v_mov_b32 v231, s{S_TAG}""")
        def msgloads():
            for j in range(3): a(f"global_load_dwordx4 {vr(MSG+4*j,4)}, v6, s[{S_WS}:{S_WS+1}] offset:{1024*j} sc1")
        gp = list(o.get("gp", (4, 4)))
        if gp[1] == 0: a("s_barrier")
        gsync = o.get("gsync", ())
        assert all(gp[1] <= k < 35 for k in gsync)
        g2, fdn = o.get("g2", None), o.get("fdn", 5)
        hb = o.get("hold", 0)
        assert hb % 2 == 0 and hb <= 8 and (not hb or g2 is not None)
        seq = [32, 33, 34, 35] + list(range(32)) if hb else list(range(36))
        if hb: OUTR, SUM = 232, 168
        acc = (lambda e: 200 + 4*e if e < 4 else 136 + 4*(e - 4)) if hb else (lambda e: ACC + 4*e)
        def ld(k):
            if k < 32:
                st, be, hf = order[k]
                a(f"global_load_dwordx4 {vr(RAW[st] + 8*be + 4*hf, 4)}, v[2:3], off{nt}")
                if k < min(31, o.get("wi_gu", 99)): a(f"v_lshl_add_u64 v[2:3], v[2:3], 0, s[{inc[k%8]}:{inc[k%8]+1}]")
            else:
                a(f"global_load_dwordx4 {vr(RAWR + 4*(k-32), 4)}, v[4:5], off{nt}")
                if k < 35: a(f"v_lshl_add_u64 v[4:5], v[4:5], 0, s[{inc[k-32]}:{inc[k-32]+1}]")
        def perms(k):
            if k < 32:
                st, be, _ = order[k]
                return [f"v_perm_b32 v{OUT[st] + 8*e + be}, v{RAW[st] + 8*be + 4 + (e>>1)}, v{RAW[st] + 8*be + (e>>1)}, s{46+(e&1)}" for e in range(8)]
            be = (k - 32) // 2
            return [f"v_perm_b32 v{OUTR + 2*e + be}, v{RAWR + 8*be + 4 + (e>>1)}, v{RAWR + 8*be + (e>>1)}, s{46+(e&1)}" for e in range(8)]
        n0 = 36 - hb
        assert all(k < n0 - 1 for k in gsync)
        for i in range(n0):
            ld(seq[i])
            if i in o.get("gst", ()): self.stamp(6 + o["gst"].index(i))
            if i + 1 == gp[0] and gp[1] > gp[0]: a(f"s_waitcnt vmcnt({o.get('gw', 0)})")
            if i + 1 == gp[1]: a("s_barrier")
            if i in gsync: a("s_barrier")
        a("s_barrier")
        if o.get("gnow"): self.mktag()
        gsetup()
        self.stamp(2)
        mk = o.get("mk", 24)
        assert mk < n0 and mk % 2 == 0
        mp = o.get("mp", 0)
        def rest():
            msgloads()
            for j in range(n0, 36): ld(seq[j])
            if g2 is not None: a("s_barrier")
        prb = f"global_load_dword v{AR+1}, v6, s[{S_WS}:{S_WS+1}] offset:2060 sc1"
        for i in range(0, n0, 2):
            a(f"s_waitcnt vmcnt({n0 - 2 - i + ((1 if mp else 3 + hb) if i > mk else 0)})")
            if i == mk:
                a("s_setprio 3")
                if mp: a(f"s_mov_b64 exec, 1\n{prb}\ns_mov_b64 exec, -1")
                else: rest()
            for l in perms(seq[i]): a(l)
        self.stamp(3)
        if mp:
            assert self.ls
            a(f"""s_mov_b32 s56, 0
s_mov_b64 exec, 1
s_branch L_mp1
L_mp0:
{prb}
s_add_u32 s56, s56, 1
s_cmp_ge_u32 s56, {o.get('lspin', LSPIN)}
s_cbranch_scc1 L_mp2
L_mp1:
s_waitcnt vmcnt(0)
v_cmp_ne_u32 vcc, s{S_TAG}, v{AR+1}
s_cbranch_vccnz L_mp0
L_mp2:
s_mov_b64 exec, -1""")
            rest()
        a("s_mov_b32 s48, 0")
        spec = o.get("spec", 0)
        ors = "s_or_b64 s[50:51], s[50:51], s[52:53]\ns_or_b64 vcc, vcc, s[50:51]"
        def check(n=0, full=True):
            a(f"""s_waitcnt vmcnt({n})
v_and_b32 v{AR}, v252, v{MSG+10}
v_and_b32 v{AR+1}, v253, v{MSG+10}
v_cmp_ne_u32 s[50:51], s{S_TAG}, v{MSG+3}
v_cmp_ne_u32 s[52:53], s{S_TAG}, v{MSG+7}
v_cmp_ne_u32 vcc, s{S_TAG}, v{MSG+11}
{ors if full else ''}""")
        check(hb, not spec)
        if not spec: a("s_cbranch_vccnz L_pollM")
        a.label("L_pollM_done")
        if spec:
            a(f"v_mfma_f32_16x16x16_bf16 {vr(acc(0),4)}, {vr(AR,2)}, {vr(OUTR,2)}, 0\n{ors}\ns_cbranch_vccnz L_pollM")
        self.stamp(4)
        mv = [f"v_swap_b32 v{MSG+1}, v{MSG+2}", f"v_mov_b32 v{MSG+3}, v{MSG+4}", f"v_mov_b32 v{MSG+4}, v{MSG+5}",
              f"v_mov_b32 v{MSG+5}, v{MSG+8}", f"v_mov_b32 v{MSG+7}, v{MSG+9}"]
        if self.gd is None: a(f"""s_lshl2_add_u32 s44, s42, s{S_WAVE}
s_cmp_lg_u32 s44, {4*o.get('fmsg', 11) if not o.get('dummy') else 's44'}
s_cbranch_scc1 L_nofl
s_mov_b64 exec, 1
global_store_dword v230, v231, s[{S_WS}:{S_WS+1}] sc1
s_mov_b64 exec, -1
L_nofl:""")
        for e in range(8):
            if e or not spec: a(f"v_mfma_f32_16x16x16_bf16 {vr(acc(e),4)}, {vr(AR,2)}, {vr(OUTR+2*e,2)}, 0")
            if e < 5: a(mv[e])
        def sums(e):
            a(f"v_add_f32 v{SUM+2*e}, v{acc(e)}, v{acc(e)+2}\nv_add_f32 v{SUM+2*e+1}, v{acc(e)+1}, v{acc(e)+3}")
            if e & 1: a(f"ds_write_b128 v7, {vr(SUM+2*e-2,4)} offset:{L_P + 1024*(e>>1)}")
        if hb:
            late = []
            for i in range(n0, 36, 2): late += [f"s_waitcnt vmcnt({34 - i})"] + perms(seq[i])
            per = -(-len(late) // 8)
            for e in range(8):
                a(f"{SM} {vr(acc(e),4)}, {vr(MSG,4)}, {vr(OUT[0]+8*e,8)}, v251")
                for _ in range(per):
                    if late: a(late.pop(0))
        for e in range(8):
            if not hb: a(f"{SM} {vr(acc(e),4)}, {vr(MSG,4)}, {vr(OUT[0]+8*e,8)}, v251")
            a(f"{SM} {vr(acc(e),4)}, {vr(MSG+4,4)}, {vr(OUT[1]+8*e,8)}, v251")
            if e >= 3: sums(e - 3)
        for e in (5, 6, 7): sums(e)
        t = 104
        if o.get("psync"):
            a(f"""v_mov_b32 v{t}, {L_TAGR + 4}
v_mov_b32 v{t+1}, 1
s_mov_b64 exec, 1
ds_add_u32 v{t}, v{t+1}
s_mov_b32 s48, 0
L_ps:
ds_read_b32 v{t+1}, v{t}
s_add_u32 s48, s48, 1
s_cmp_ge_u32 s48, {SPIN}
s_cbranch_scc1 L_psx
s_waitcnt lgkmcnt(0)
v_cmp_ne_u32 vcc, 4, v{t+1}
s_cbranch_vccnz L_ps
L_psx:
s_mov_b64 exec, -1
s_waitcnt lgkmcnt(0)""")
        else: a("s_waitcnt lgkmcnt(0)\ns_barrier")
        self.stamp(5)
        a(f"""ds_read2st64_b64 {vr(t,4)}, v248 offset0:0 offset1:8
ds_read2st64_b64 {vr(t+4,4)}, v248 offset0:16 offset1:24
ds_read2st64_b64 {vr(t+8,4)}, v249 offset0:0 offset1:8
ds_read2st64_b64 {vr(t+12,4)}, v249 offset0:16 offset1:24
s_waitcnt lgkmcnt(2)
v_pk_add_f32 {vr(t,2)}, {vr(t,2)}, {vr(t+2,2)}
v_pk_add_f32 {vr(t+4,2)}, {vr(t+4,2)}, {vr(t+6,2)}
v_pk_add_f32 {vr(t,2)}, {vr(t,2)}, {vr(t+4,2)}
v_mul_f32 v{t+2}, {NLOG2E}, v{t}
v_mul_f32 v{t+3}, {NLOG2E}, v{t+1}
v_exp_f32 v{t+2}, v{t+2}
v_exp_f32 v{t+3}, v{t+3}
s_waitcnt lgkmcnt(0)
v_pk_add_f32 {vr(t+8,2)}, {vr(t+8,2)}, {vr(t+10,2)}
v_fma_f32 v{t+2}, v{t+2}, s58, s58
v_fma_f32 v{t+3}, v{t+3}, s58, s58
v_rcp_f32 v{t+2}, v{t+2}
v_rcp_f32 v{t+3}, v{t+3}
v_pk_add_f32 {vr(t+12,2)}, {vr(t+12,2)}, {vr(t+14,2)}
v_pk_add_f32 {vr(t+8,2)}, {vr(t+8,2)}, {vr(t+12,2)}
v_pk_mul_f32 {vr(t,2)}, {vr(t,2)}, {vr(t+2,2)}
v_pk_mul_f32 {vr(t,2)}, {vr(t,2)}, {vr(t+8,2)}
v_cvt_pk_bf16_f32 v{t}, v{t}, v{t+1}
ds_write_b16 v250, v{t} offset:{L_H}
ds_write_b16_d16_hi v250, v{t} offset:{L_H+16}
s_waitcnt lgkmcnt(0)
s_barrier""")
        self.finish("ffn_gu")
        a.label("L_pollM")
        if self.ls:
            a(f"""s_mov_b64 exec, 1
L_pollMh:
global_load_dword v{AR+1}, v6, s[{S_WS}:{S_WS+1}] offset:2060 sc1
s_add_u32 s48, s48, 1
s_cmp_lt_u32 s48, {self.o.get('lspin', LSPIN)}
s_cbranch_scc1 L_pollMk
s_mov_b64 exec, -1
v_subrev_u32 v6, s59, v6
s_mov_b64 exec, 1
s_mov_b32 s59, 0
L_pollMk:
s_cmp_ge_u32 s48, {SPIN}
s_cbranch_scc1 L_pollMx
s_waitcnt vmcnt(0)
v_cmp_ne_u32 vcc, s{S_TAG}, v{AR+1}
s_cbranch_vccnz L_pollMh
L_pollMx:
s_mov_b64 exec, -1
s_waitcnt vmcnt(0)""")
        elif self.o.get("mhdr", 1):
            a(f"""v_mov_b32 v{AR}, {WS_SEL + 12288 + 12}
s_mov_b64 exec, 1
L_pollMh:
global_load_dword v{AR+1}, v{AR}, s[{S_WS}:{S_WS+1}] sc1
s_add_u32 s48, s48, 1
s_cmp_ge_u32 s48, {SPIN}
s_cbranch_scc1 L_pollMx
s_waitcnt vmcnt(0)
v_cmp_ne_u32 vcc, s{S_TAG}, v{AR+1}
s_cbranch_vccnz L_pollMh
L_pollMx:
s_mov_b64 exec, -1
s_waitcnt vmcnt(0)""")
        msgloads()
        a("s_add_u32 s48, s48, 1")
        check()
        a(f"""s_cbranch_vccz L_pollM_done
s_cmp_lt_u32 s48, {SPIN}
s_cbranch_scc1 L_pollM
s_mov_b64 s[50:51], 0
s_mov_b64 s[52:53], 0
s_mov_b64 vcc, 0
s_branch L_pollM_done""")
        if o.get("xearly", 1): self.lnx()
        a.label("L_dn")
        DO, DOX, DR, DRX, AC, HF, GR = 8, 72, 104, 168, 200, 112, 120
        pc = o.get("pc", 0)
        a(f"""s_sub_u32 s43, s{S_WAVE}, 4
s_mul_i32 s45, s42, {64*1152}
v_lshrrev_b32 v3, 4, v1
v_mul_u32_u24 v2, 1152, v3
v_and_b32 v5, 15, v1
v_add_u32 v2, s45, v2
v_lshl_add_u32 v4, v5, 3, v2
v_lshl_add_u32 v2, v5, 4, v2
s_lshl_b32 s44, s43, 8
v_add_u32 v2, s44, v2
s_lshl_b32 s45, s42, 7
s_add_u32 s45, s45, {WS_PART}
{'v_and_b32 v3, 3, v1' if pc else ''}
{'v_lshrrev_b32 v5, 2, v1' if pc else ''}
v_lshl_add_u32 v3, v3, 4, s45
v_and_b32 v6, 1, {'v5' if pc else 'v1'}
v_lshl_add_u32 v3, v6, 6, v3
v_lshrrev_b32 v5, 1, v5
v_mul_u32_u24 v5, 9216, v5
v_add_u32 v7, v3, v5
v_add_u32 v5, v7, v5
s_mul_i32 s44, s43, {16*9216}
v_add_u32 v5, s44, v5
v_add_u32 v6, 9216, v5
v_add_u32 v7, {64*9216}, v7
v_lshlrev_b32 v253, 4, v1
v_mov_b32 v254, 0x9fff9fff
v_bfe_u32 v252, v1, 1, 1
v_mul_u32_u24 v251, 0xaaaa, v252
v_add_u32 v251, 0x4444, v251
s_mov_b32 s46, 0x05040100
s_mov_b32 s47, 0x07060302""")
        for r in range(AC, AC+48): a(f"v_mov_b32 v{r}, 0")
        a(f"""s_cmp_eq_u32 s{S_WAVE}, 7
s_cbranch_scc1 L_dnx""")
        def dn(x):
            xe = x and o.get("xearly", 1)
            def xloads():
                for k in range(16):
                    if k: a("v_add_u32 v4, 4608, v4")
                    a(f"global_load_dwordx2 {vr(DRX+2*k,2)}, v4, s[{S_WD}:{S_WD+1}] offset:1024")
            def xperms():
                for be in range(8):
                    for e in range(4): a(f"v_perm_b32 v{DOX + 8*e + be}, v{DRX + 4*be + 2 + (e>>1)}, v{DRX + 4*be + (e>>1)}, s{46+(e&1)}")
            a("s_barrier\n" * len(gsync))
            if xe:
                a("s_waitcnt vmcnt(0)")
                xperms()
            if x and fdn is not None:
                a(f"""s_mul_i32 s44, s42, {o.get('fstr', 128)}
s_add_u32 s44, s44, {WS_FLAG}
s_cmp_eq_u32 s42, {o.get('fmsg', 11)}
s_cselect_b32 s45, {0x40000 if self.gd is None else 0}, 0
s_add_u32 s44, s44, s45
v_mov_b32 v249, s44
v_mov_b32 v250, s{S_TAG}""")
            a("s_barrier")
            if x and not xe: xloads()
            ex = [0]
            def perms(be):
                for e in range(8): a(f"v_perm_b32 v{DO + 8*e + be}, v{DR + 8*be + 4 + (e>>1)}, v{DR + 8*be + (e>>1)}, s{46+(e&1)}")
            lag = o.get("dlag", 4)
            for be in range(8):
                for hf in range(2):
                    k = 2*be + hf
                    if k and k < o.get("wi_dn", 99): a("v_add_u32 v2, 4608, v2")
                    if k == g2: a("s_barrier")
                    a(f"global_load_dwordx4 {vr(DR+4*k,4)}, v2, s[{S_WD}:{S_WD+1}]{dnt}")
                if be == 7: self.stamp(2)
                if x and be == fdn and self.gd is None:
                    assert fdn < 7
                    a(f"s_mov_b64 exec, 1\nglobal_store_dword v249, v250, s[{S_WS}:{S_WS+1}] sc1\ns_mov_b64 exec, -1")
                if be >= lag:
                    a(f"s_waitcnt vmcnt({2*lag})")
                    if be == lag and x and not xe: xperms()
                    perms(be - lag)
            dl = o.get("dlate", lag)
            hq = o.get("hq", 0)
            assert hq <= min(lag, 2) and (dl >= hq or o.get("psync")) and (not hq or self.gd is None)
            for be in range(8 - lag, 8 - hq):
                if be == 8 - dl and not o.get("psync"): a("s_barrier")
                a(f"s_waitcnt vmcnt({2*(7 - be)})")
                perms(be)
            if dl == hq and hq and not o.get("psync"): a("s_barrier")
            if not hq: self.stamp(3)
            fl = f"s_mov_b64 exec, 1\nglobal_store_dword v249, v250, s[{S_WS}:{S_WS+1}] sc1\ns_mov_b64 exec, -1"
            if x and self.gd == -1: a(fl)
            if dl == 0 and not o.get("psync"): a("s_barrier")
            a("s_barrier")
            a(f"ds_read_b128 {vr(HF,4)}, v253 offset:{L_H}")
            if x and self.gd == 0: a(fl)
            if hq == 2: a("s_waitcnt vmcnt(2)"); perms(6)
            tiles = list(range(12 if x else 8))
            if hq and x: tiles = tiles[8:] + tiles[:8]
            p7 = [f"v_perm_b32 v{DO + 8*e + 7}, v{DR + 60 + (e>>1)}, v{DR + 56 + (e>>1)}, s{46+(e&1)}" for e in range(8)] if hq else []
            def last():
                a(f"s_waitcnt vmcnt({nst[0]})")
                self.stamp(3)
                a(p7.pop(0)); a(p7.pop(0))
            nst = [0]
            if hq and not x: last()
            a("s_waitcnt lgkmcnt(0)")
            self.stamp(6)
            pend = []
            def outt(e, pk):
                ac, g = AC + 4*e, GR + e
                L = [f"v_pk_add_f32 {vr(ac,2)}, {vr(ac,2)}, {vr(ac+2,2)}"] if pk else [f"v_add_f32 v{ac}, v{ac}, v{ac+2}", f"v_add_f32 v{ac+1}, v{ac+1}, v{ac+3}"]
                L += [f"v_cvt_pk_bf16_f32 v{g}, v{ac}, v{ac+1}", f"v_and_or_b32 v{g}, v{g}, v254, s{48 + (e & 3)}"]
                if e & 3 == 3: L.append(f"global_store_dwordx4 v{5 + (e >> 2)}, {vr(g-3,4)}, s[{S_WS}:{S_WS+1}] sc1")
                return L
            def put(l):
                a(l); nst[0] += l.startswith("global_store")
            done = 0
            for n, e in enumerate(tiles):
                if hq and x and e == 0:
                    for l in pend: put(l)
                    pend = []
                    while done < 4:
                        for l in outt(tiles[done], False): put(l)
                        done += 1
                    last()
                a(f"{SM} {vr(AC+4*e,4)}, {vr(HF,4)}, {vr(DO+8*e,8)}, v251")
                if x and self.gd == n + 1: a(fl)
                slots = 2
                if e < 8 and p7: a(p7.pop(0)); slots = 1
                for _ in range(slots):
                    if not pend and done < n and a.pad(outt(tiles[done], False)[0]) <= 0: pend = outt(tiles[done], False); done += 1
                    put(pend.pop(0) if pend else "s_nop 0")
            for l in pend: a(l)
            for n in range(done, len(tiles)):
                for l in outt(tiles[n], n > done): a(l)
            self.stamp(7)
            if self.stamps == 1: a("s_waitcnt vmcnt(0)"); self.stamp(8)
            self.finish("ffn" + ("x" if x else ""))
        dn(False)
        a.label("L_dnx")
        dn(True)
        a.label("L_pref")
        if o.get("gnow"):
            a(f"s_cmp_eq_u32 s{S_NOLN}, 0\ns_cbranch_scc1 L_pref1")
            if o["gnow"] == 1: self.mktag()
            else: a(f"s_cmp_lt_u32 s2, {248 if self.ls else 255}\ns_cbranch_scc1 L_pref1"); self.mktag()
            a.label("L_pref1")
        dnc, pgu = self.dnc, self.pgu
        assert all(1 <= dnc(n) <= 9*n for n in self.nf)
        pt = o.get("pt")
        a(f"""s_cmp_ge_u32 s2, {248 if self.ls else 255}
s_cbranch_scc1 L_sel_lo
s_sub_u32 s43, s{S_R}, s61
s_cmp_lt_u32 s{S_XCD}, {self.nH}
s_cselect_b32 s47, {16 - self.ex}, 16
s_sub_u32 s47, s47, s61
s_cmp_ge_u32 s{S_XCD}, {0 if self.ls else 7}
s_subb_u32 s47, s47, 0
s_mul_i32 s42, s{S_WAVE}, s47
s_add_u32 s42, s42, s43
s_mul_i32 s47, s47, {pt[0] if pt else 8}
s_mul_i32 s46, s60, 73728
{self.seln(52, lambda n: 9*n - dnc(n))}
{self.seln(53, lambda n: 2*n*pgu(n))}
{self.seln(54, lambda n: self.RE - 2*pgu(n))}
v_lshlrev_b32 v2, 7, v1""")
        if o.get("tw"):
            a(f"""s_lshl_b32 s44, s43, 3
s_add_u32 s44, s44, s{S_WAVE}
s_cmp_ge_u32 s44, 4
s_cbranch_scc1 L_tw
s_and_b32 s45, s44, 1
v_lshl_add_u32 v4, s45, 6, v1
v_mul_u32_u24 v4, 6, v4
v_min_u32 v4, 575, v4
v_mul_u32_u24 v4, 9216, v4
s_lshl_b32 s45, s60, 7
v_add_u32 v4, s45, v4
s_bitcmp0_b32 s44, 1
s_cselect_b64 s[56:57], s[{S_WG}:{S_WG+1}], s[{S_WU}:{S_WU+1}]
global_load_dword v9, v4, s[56:57]
s_mul_i32 s45, s61, 288
v_lshl_add_u32 v4, s44, 6, v1
v_mul_u32_u24 v4, s45, v4
v_add_u32 v4, s46, v4
s_mov_b64 exec, {'-1' if o['tw'] > 1 else '1'}
global_load_dword v9, v4, s[{S_WD}:{S_WD+1}]
s_mov_b64 exec, -1
L_tw:""")
        plim = o.get("plim", 1)
        assert not (o.get("pack") and plim)
        lab = [0]
        def gunit(i):
            a(f"""s_mul_i32 s44, s42, s59
s_lshr_b32 s44, s44, 16
s_mul_i32 s45, s44, s61
s_sub_u32 s45, s42, s45
v_lshl_add_u32 v4, s45, 6, v1
v_mul_u32_u24 v5, s59, v4
v_lshrrev_b32 v5, 16, v5
v_mul_u32_u24 v6, s61, v5
v_sub_u32 v6, v4, v6
v_and_b32 v7, 31, v5
v_lshrrev_b32 v5, 5, v5
v_mul_u32_u24 v7, 18, v7
s_andn2_b32 s45, s44, 1
{f's_sub_u32 s45, {self.RE - 2}, s45' if o.get('pback') else 's_add_u32 s45, s45, s54'}
v_add3_u32 v5, v5, v7, s45
v_mul_u32_u24 v5, 9216, v5
v_add_u32 v6, s60, v6
v_lshl_add_u32 v5, v6, 7, v5
s_bitcmp0_b32 s44, 0
s_cselect_b64 s[56:57], s[{S_WG}:{S_WG+1}], s[{S_WU}:{S_WU+1}]
global_load_dword v{10+i}, v5, s[56:57]""")
        def dunit(i):
            a(f"""s_sub_u32 s45, s42, s53
s_cmp_ge_u32 s45, s52
s_cbranch_scc1 L_pref_done""")
            if o.get("dsc"):
                a(f"""v_lshl_add_u32 v4, s45, 6, v1
v_mul_u32_u24 v5, s59, v4
v_lshrrev_b32 v5, 16, v5
v_mul_u32_u24 v6, s61, v5
v_sub_u32 v6, v4, v6
v_mul_u32_u24 v6, 576, v6
v_add_lshl_u32 v6, v6, v5, 7
v_add_u32 v3, s46, v6
global_load_dword v{10+i}, v3, s[{S_WD}:{S_WD+1}]""")
                return
            a(f"""s_mul_i32 s43, s45, s59
s_lshr_b32 s43, s43, 16
s_mul_i32 s44, s43, s61
s_sub_u32 s44, s45, s44
s_mul_i32 s44, s44, 73728
s_lshl_b32 s43, s43, 13
s_add_u32 s43, s43, s44
s_add_u32 s43, s43, s46
v_add_u32 v3, s43, v2
global_load_dword v{10+i}, v3, s[{S_WD}:{S_WD+1}]""")
        if pt:
            assert pt[0] <= 4
            a(f"s_cmp_ge_u32 s{S_WAVE}, {pt[0]}\ns_cbranch_scc1 L_pref_done")
            a.label("L_pf_l")
            a("s_cmp_ge_u32 s42, s53\ns_cbranch_scc1 L_pf_d")
            gunit(0)
            a("s_branch L_pf_n")
            a.label("L_pf_d")
            dunit(0)
            a.label("L_pf_n")
            a("s_add_u32 s42, s42, s47")
            self.lnbars("pf3", 1)
            a(f"s_mov_b32 s{S_NOLN}, 0\ns_waitcnt vmcnt({pt[1] - 1})\ns_branch L_pf_l")
        else: a(f"s_cmp_lt_u32 s{S_WAVE}, {plim}\ns_cbranch_scc1 L_pf_e")
        if not pt: self.pf8(gunit, dunit)
        a.label("L_pref_done")
        if self.stamps: a("s_waitcnt vmcnt(0)"); self.stamp(4)
        self.finish("pref")
    def pf8(self, gunit, dunit):
        a, o = self.a, self.o
        self.lnbars("pf2", 1)
        a(f"s_mov_b32 s{S_NOLN}, 0")
        if o.get("puntil"): self.until(o["puntil"])
        if o.get("pack"): a("s_waitcnt vmcnt(0)\ns_barrier")
        a.label("L_pf_e")
        for i in range(o.get("prounds", 4)):
            a(f"s_cmp_ge_u32 s42, s53\ns_cbranch_scc1 L_pf_d{i}")
            gunit(i)
            a(f"s_branch L_pf_n{i}")
            a.label(f"L_pf_d{i}")
            if o.get("pw", 0) and i: a(f"s_waitcnt vmcnt({o['pw'] - 1})")
            dunit(i)
            a.label(f"L_pf_n{i}")
            a("s_add_u32 s42, s42, s47")
            if i == 0:
                self.lnbars("pf3", 1)
                if o.get("puntil"): self.until(o["puntil"])

    def tail(self):
        a = self.a
        if self.stamps in (1, 2):
            a.label("L_stampout")
            self.stamp(11)
            a("s_mov_b64 exec, -1\ns_waitcnt lgkmcnt(0)")
            for i in range(12): a(f"v_mov_b32 v{10+i}, s{70+2*i}")
            a(f"""s_lshl_b32 s42, s2, 3
s_add_u32 s42, s42, s{S_WAVE}
s_lshl_b32 s42, s42, 6
s_add_u32 s42, s42, {WS_STAMP}
v_mov_b32 v3, s42
s_mov_b64 exec, 1
global_store_dwordx4 v3, v[10:13], s[{S_WS}:{S_WS+1}]
global_store_dwordx4 v3, v[14:17], s[{S_WS}:{S_WS+1}] offset:16
global_store_dwordx4 v3, v[18:21], s[{S_WS}:{S_WS+1}] offset:32
s_endpgm""")
        a.label("L_codeend")
        a("s_endpgm")
        a.raw(f""".section .rodata,"a"
.p2align 6
.amdhsa_kernel {NAME}_kernel
  .amdhsa_next_free_vgpr 256
  .amdhsa_next_free_sgpr 96
  .amdhsa_accum_offset 256
  .amdhsa_group_segment_fixed_size 0
  .amdhsa_kernarg_size 136
  .amdhsa_user_sgpr_count 2
  .amdhsa_user_sgpr_kernarg_segment_ptr 1
  .amdhsa_system_sgpr_workgroup_id_x 1
.end_amdhsa_kernel""")

    def build(self):
        self.entry(); self.ln(); self.ffn(); self.selector(); self.helper(); self.mfma_wave(); self.tail()
        return self.a.text()

def roles(opt=None):
    import numpy as np
    g = Gen(opt or {}); nf = np.array(g.nfr)
    i = np.arange(256); x = i & 7; sl = i >> 3
    nc = np.where(x < g.nH, 16 + g.ex, 16)
    return dict(lnx=i < 248, lnr=(sl >= nc) & (i < 248), conv=sl < nc, ffn=(sl >= nc) & (sl < nc + nf[x]), pref=(sl >= nc + nf[x]) & (i < (248 if g.ls else 255)), sel=i == 255, lsel=i >= 248)
STAMPS = [("all", "start", None, 0, 8, 0), ("all", "karg", None, 0, 8, 1), ("all", "LNdata", "lnr", 4, 8, 9), ("all", "LNpub", "lnx", 4, 8, 10), ("all", "END", None, 0, 8, 11),
          ("conv", "params", "conv", 0, 4, 2), ("conv", "mfBK", "conv", 0, 4, 8), ("conv", "kready", "conv", 0, 4, 3), ("conv", "@2", "conv", 4, 8, 2), ("conv", "@6", "conv", 4, 8, 6), ("conv", "@3", "conv", 4, 8, 3), ("conv", "pollA", "conv", 4, 8, 5), ("conv", "B1", "conv", 0, 4, 4), ("conv", "g2", "conv", 4, 8, 9), ("conv", "B5", "conv", 0, 4, 5),
          ("conv", "stored", "conv", 4, 8, 7), ("conv", "go", "conv", 0, 1, 6), ("conv", "pollB", "conv", 0, 1, 7),
          ("sel", "bar", "sel", 0, 8, 4), ("sel", "poll", "sel", 0, 8, 5), ("sel", "top8", "sel", 0, 8, 6), ("sel", "x", "sel", 0, 8, 7), ("sel", "pub", "sel", 0, 8, 8), ("sel", "ack", "sel", 0, 8, 9), ("sel", "agg", "sel", 4, 5, 10), ("sel", "Lpoll", "lsel", 0, 8, 5), ("sel", "Lpub", "lsel", 0, 8, 8), ("sel", "Lack", "lsel", 0, 8, 9),
          ("ffn", "guiss", "ffn", 0, 4, 2), ("ffn", "gu", "ffn", 0, 4, 3), ("ffn", "dniss", "ffn", 4, 8, 2), ("ffn", "dn", "ffn", 4, 8, 3), ("ffn", "pref", "pref", 0, 8, 4),
          ("ffn", "msg", "ffn", 0, 4, 4), ("ffn", "bar", "ffn", 0, 4, 5), ("ffn", "h", "ffn", 4, 8, 6), ("ffn", "pub", "ffn", 4, 8, 7), ("ffn", "ack", "ffn", 4, 8, 8)]

CST = [("mf", n, "conv", 1, 4, k) for n, k in (("B1", 4), ("a2", 6), ("a3", 7), ("a4", 9), ("a5", 10), ("B5", 5))] + [("hl", n, "conv", 4, 8, k) for n, k in (("a2", 2), ("a3", 3), ("a4", 6), ("a6", 8), ("st", 7))]

def generate(opt=None):
    return Gen(opt or {}).build()

if __name__ == "__main__":
    opt = eval(sys.argv[2]) if len(sys.argv) > 2 else {}
    open(sys.argv[1], "w").write(generate(opt))
```
